```python
import torch

def _softmax(x, axis=-1):
    return torch.softmax(x, dim=axis)

def _gelu(x):
    return torch.nn.functional.gelu(x, approximate='tanh')

def _silu(x):
    return torch.nn.functional.silu(x)

def _sigmoid(x):
    return torch.sigmoid(x)

def _layernorm(x, axis=-1, eps=1e-05):
    m = x.mean(dim=axis, keepdim=True)
    v = x.var(dim=axis, keepdim=True, unbiased=False)
    return (x - m) / torch.sqrt(v + eps)

def _scatter_add(tgt, idx, src, axis=0):
    return tgt.clone().index_add_(axis, idx, src)

def _segment_sum(src, seg, n):
    out = torch.zeros((n,) + src.shape[1:], dtype=src.dtype)
    return out.index_add_(0, seg, src)

def _pad(x, pw):
    flat = tuple((v for pair in reversed(pw) for v in pair))
    return torch.nn.functional.pad(x, flat)
kernel_name = 'adaLN_cond__sliding_block_cached__mixer_s_mlp__prompt'

def setup_inputs():

    _w = lambda a: (lambda t: t.to(torch.bfloat16) if t.is_floating_point() else t)(torch.as_tensor(a))

    def _A_setup():
        B, Sq, D = (1, 2048, 640)
        Hq, Hkv, Sk, Dh = (32, 32, 2048, 128)
        assert Hq % Hkv == 0, (Hq, Hkv)
        return {'x': _w((lambda *s: torch.randn(*s, dtype=torch.bfloat16) * 0.1)(B, Sq, D)), 'k_cache': _w((lambda *s: torch.randn(*s, dtype=torch.bfloat16) * 0.8)(B, Hkv, Sk, Dh)), 'v_cache': _w((lambda *s: torch.randn(*s, dtype=torch.bfloat16) * 0.8)(B, Hkv, Sk, Dh)), 'wq': _w((lambda *s: torch.randn(*s, dtype=torch.bfloat16) * 0.8)(D, Hq * Dh) * D ** (-0.5)), 'wo': _w((lambda *s: torch.randn(*s, dtype=torch.bfloat16) * 0.8)(Hq * Dh, D) * (Hq * Dh) ** (-0.5))}
    _A_in = _A_setup()

    def _B_setup():
        B, S, D, F = (1, 2048, 640, 1728)
        return {'x': _w((lambda *s: torch.randn(*s, dtype=torch.bfloat16) * 0.1)(B, S, D)), 'w1': _w((lambda *s: torch.randn(*s, dtype=torch.bfloat16) * 3.2)(D, D) * D ** (-0.5)), 'w2': _w((lambda *s: torch.randn(*s, dtype=torch.bfloat16) * 3.2)(D, D) * D ** (-0.5)), 'w3': _w((lambda *s: torch.randn(*s, dtype=torch.bfloat16) * 3.2)(D, F) * D ** (-0.5)), 'w4': _w((lambda *s: torch.randn(*s, dtype=torch.bfloat16) * 3.2)(F, D) * F ** (-0.5))}
    _B_in = _B_setup()
    return {'A_x': _A_in['x'], 'A_k_cache': _A_in['k_cache'], 'A_v_cache': _A_in['v_cache'], 'A_wq': _A_in['wq'], 'A_wo': _A_in['wo'], 'B_x': _B_in['x'], 'B_w1': _B_in['w1'], 'B_w2': _B_in['w2'], 'B_w3': _B_in['w3'], 'B_w4': _B_in['w4'], 'c': _w((lambda *s: torch.randn(*s, dtype=torch.bfloat16) * 0.2)(1, 640) * 8.0), 'w_mod': _w((lambda *s: torch.randn(*s, dtype=torch.bfloat16) * 0.2)(640, 6 * 640) * 640 ** (-0.5) * 8.0)}

def reference(A_x, A_k_cache, A_v_cache, A_wq, A_wo, B_x, B_w1, B_w2, B_w3, B_w4, c, w_mod):

    def _A_ref(x, k_cache, v_cache, wq, wo):
        B, Sq, D = x.shape
        Hq, Dh = (32, 128)
        Hkv, Sk = (k_cache.shape[1], k_cache.shape[2])
        W = min(4096, max(256, Sk // 4))
        rep = Hq // Hkv
        q = (lambda x, *d: x.permute(*d))((x @ wq).reshape(B, Sq, Hq, Dh), 0, 2, 1, 3)
        k = (lambda x, n, axis: torch.repeat_interleave(x, n, dim=axis))(k_cache[:, :, Sk - W:, :], rep, axis=1)
        v = (lambda x, n, axis: torch.repeat_interleave(x, n, dim=axis))(v_cache[:, :, Sk - W:, :], rep, axis=1)
        scores = torch.einsum('bhqd,bhkd->bhqk', q, k) * Dh ** (-0.5)
        p = _softmax(scores, axis=-1)
        o = torch.einsum('bhqk,bhkd->bhqd', p, v)
        return (lambda x, *d: x.permute(*d))(o, 0, 2, 1, 3).reshape(B, Sq, Hq * Dh) @ wo

    def _B_ref(x, w1, w2, w3, w4):
        B, S, D = x.shape
        h = _gelu(_layernorm(x, axis=-1) @ w1)
        c = D // 4
        g0 = _pad(h[:, :, 0 * c:1 * c], ((0, 0), (1, 0), (0, 0)))[:, :S, :]
        g1 = _pad(h[:, :, 1 * c:2 * c], ((0, 0), (0, 1), (0, 0)))[:, 1:, :]
        g2 = _pad(h[:, :, 2 * c:3 * c], ((0, 0), (2, 0), (0, 0)))[:, :S, :]
        g3 = _pad(h[:, :, 3 * c:], ((0, 0), (0, 2), (0, 0)))[:, 2:, :]
        hs = torch.concatenate([g0, g1, g2, g3], axis=-1) @ w2
        x1 = x + hs
        h2 = _gelu(_layernorm(x1, axis=-1) @ w3) @ w4
        return x1 + h2
    x = A_x
    mod = (_silu(c) @ w_mod).reshape(c.shape[0], 6, 1, -1)
    sa, ca, ga, sb, cb, gb = (mod[:, 0].clone(), mod[:, 1].clone(), mod[:, 2].clone(), mod[:, 3].clone(), mod[:, 4].clone(), mod[:, 5].clone())
    h = _layernorm(x, axis=-1) * (1 + ca) + sa
    x = x + ga * _A_ref(h, A_k_cache, A_v_cache, A_wq, A_wo)
    h = _layernorm(x, axis=-1) * (1 + cb) + sb
    x = x + gb * _B_ref(h, B_w1, B_w2, B_w3, B_w4)
    return x
```

```python
from dsl import *
import struct

KA = dict(x=0, k=8, v=16, wq=24, wo=32, bx=40, w1=48, w2=56, w3=64, w4=72, c=80, wmod=88, out=96, dbg=104, ws=112)
WS = dict(MOD=0x0, U1=0x4000, T1=0x4A00, CS1=0x5400, SCAL=0x5E00, CS3=0x6000,
          H=0x10000, SP1=0x290000, SP3=0x310000, X2=0x330000, H1=0x5B0000, X1=0x830000, G=0xAB0000,
          FWO=0x1170000, FW1=0x1670000, FW2=0x1738000, FW3=0x1800000, FW4=0x1A30000, O=0x1C50000, END=0x2C50000)
SZ = dict(H=0x280000, SP1=0x80000, SP3=0x20000, X2=0x280000, H1=0x280000, X1=0x280000, G=0x6C0000,
          FWO=0x500000, FW1=0xC8000, FW2=0xC8000, FW3=0x230000, FW4=0x21C000, O=0x1000000)

def f2u(x): return struct.unpack('<I', struct.pack('<f', x))[0]
def fhex(x): return f"0x{f2u(x):08x}"

LOG2E = 1.4426950408889634
QSCALE = (128 ** -0.5) * LOG2E
GELU_C1 = -2 * 0.7978845608028654 * LOG2E
GELU_C2 = GELU_C1 * 0.044715

def srd(p, s, ptr, size, off=0):
    if off:
        p(f"s_add_u32 s{s}, s{ptr}, {off}")
        p(f"s_addc_u32 s{s+1}, s{ptr+1}, 0")
    else:
        p(f"s_mov_b32 s{s}, s{ptr}")
        p(f"s_mov_b32 s{s+1}, s{ptr+1}")
    p(f"s_mov_b32 s{s+2}, {size}")
    p(f"s_mov_b32 s{s+3}, 0x20000")

def load_ptr(p, s, name):
    p(f"s_load_dwordx2 s[{s}:{s+1}], s[0:1], {KA[name]}")

def wave_id(p, sdst, vtmp):
    p(f"v_lshrrev_b32 v{vtmp}, 6, v0")
    p("s_nop 0")
    p(f"v_readfirstlane_b32 s{sdst}, v{vtmp}")
    p("s_nop 0")

def bf16_round_pair(p, vd, va, vb):
    p(f"v_cvt_pk_bf16_f32 v{vd}, v{va}, v{vb}")

def unpack_lo(p, vd, vs): p(f"v_lshlrev_b32 v{vd}, 16, v{vs}")
def unpack_hi(p, vd, vs): p(f"v_and_b32 v{vd}, 0xffff0000, v{vs}")

def xlane_sum_16_32(p, regs, tmpbase):
    n = len(regs)
    for step in ('v_permlane16_swap_b32', 'v_permlane32_swap_b32'):
        for i, r in enumerate(regs): p(f"v_mov_b32 v{tmpbase+i}, v{r}")
        if n < 2: p("s_nop 1")
        elif n < 3: p("s_nop 0")
        p("s_nop 0")
        for i, r in enumerate(regs): p(f"{step} v{r}, v{tmpbase+i}")
        p("s_nop 0")
        for i, r in enumerate(regs): p(f"v_add_f32 v{r}, v{r}, v{tmpbase+i}")

def row16_sum(p, regs):
    for sh in (8, 4, 2, 1):
        p("s_nop 1")
        for r in regs:
            p(f"v_add_f32_dpp v{r}, v{r}, v{r} row_ror:{sh} row_mask:0xf bank_mask:0xf")
        if len(regs) == 1: pass

def gelu_block(p, xs, ts, vC1, vC2):
    for x, t in zip(xs, ts): p(f"v_mul_f32 v{t}, v{x}, v{x}")
    for x, t in zip(xs, ts): p(f"v_fma_f32 v{t}, v{t}, v{vC2}, v{vC1}")
    for x, t in zip(xs, ts): p(f"v_mul_f32 v{t}, v{t}, v{x}")
    for x, t in zip(xs, ts): p(f"v_exp_f32 v{t}, v{t}")
    if len(xs) < 2: p("s_nop 0")
    for x, t in zip(xs, ts): p(f"v_add_f32 v{t}, 1.0, v{t}")
    for x, t in zip(xs, ts): p(f"v_rcp_f32 v{t}, v{t}")
    if len(xs) < 2: p("s_nop 0")
    for x, t in zip(xs, ts): p(f"v_mul_f32 v{x}, v{x}, v{t}")
```

```python
import re

REG_RE = re.compile(r'^-?(?:abs\()?([vas])(?:\[(\d+):(\d+)\]|(\d+))\)?$')

def regs_of(op):
    op = op.strip()
    if op.startswith('|') and op.endswith('|'): op = op[1:-1]
    if op.startswith('-|'): op = op[2:-1]
    m = REG_RE.match(op)
    if m:
        t = m.group(1)
        if m.group(2) is not None:
            return [(t, i) for i in range(int(m.group(2)), int(m.group(3)) + 1)]
        return [(t, int(m.group(4)))]
    if op == 'vcc': return [('s', 'vcc_lo'), ('s', 'vcc_hi')]
    if op in ('vcc_lo', 'vcc_hi', 'm0', 'exec_lo', 'exec_hi'): return [('s', op)]
    if op == 'exec': return [('s', 'exec_lo'), ('s', 'exec_hi')]
    return []

TRANS = ('v_exp_f32', 'v_log_f32', 'v_rcp_f32', 'v_rsq_f32', 'v_sqrt_f32', 'v_sin_f32', 'v_cos_f32', 'v_rcp_iflag_f32')
VCC = [('s', 'vcc_lo'), ('s', 'vcc_hi')]
EXEC = [('s', 'exec_lo'), ('s', 'exec_hi')]

class Ins:
    __slots__ = ('text', 'op', 'kind', 'w', 'r', 'passes', 'cregs', 'dregs', 'tag', 'nop', 'wide_store', 'dpp', 'cnt')
    def __init__(self, text, tag=None):
        self.text = text; self.tag = tag
        t = text.split(';')[0].strip()
        parts = t.split(None, 1)
        op = parts[0]; self.op = op
        rest = parts[1] if len(parts) > 1 else ''
        ops = [o.strip() for o in rest.split(',')] if rest else []
        mods = ''
        if ops:
            sp = ops[-1].split(None, 1)
            if len(sp) > 1 and not ops[-1].startswith('s_'):
                ops[-1] = sp[0]; mods = sp[1]
        self.w = []; self.r = []; self.passes = 0; self.cregs = []; self.dregs = []; self.nop = 1
        self.wide_store = False; self.dpp = False; self.cnt = None
        base = op.replace('_e32', '').replace('_e64', '').replace('_dpp', '').replace('_sdwa', '')
        R = lambda i: regs_of(ops[i]) if i < len(ops) else []
        allr = lambda a: [x for i in range(a, len(ops)) for x in regs_of(ops[i])]
        if op.startswith('v_mfma'):
            self.kind = 'mfma'
            self.passes = 8 if '32x32' in op else 4
            self.w = R(0); self.dregs = R(0); self.cregs = R(3); self.r = R(1) + R(2) + R(3)
        elif op.startswith('ds_read') or op.startswith('ds_bpermute') or op.startswith('ds_swizzle'):
            self.kind = 'ds_read'; self.w = R(0); self.r = allr(1); self.cnt = 'lg'
        elif op.startswith('ds_write'):
            self.kind = 'ds_write'; self.r = allr(0); self.cnt = 'lg'
        elif op.startswith('buffer_load') or op.startswith('global_load'):
            self.cnt = 'vm'
            if ' lds' in (' ' + mods) or op.startswith('global_load_lds'):
                self.kind = 'dma'; self.r = allr(0) + [('s', 'm0')]
            else:
                self.kind = 'vload'; self.w = R(0); self.r = allr(1)
        elif op.startswith('buffer_store') or op.startswith('global_store') or op.startswith('buffer_atomic') or op.startswith('global_atomic'):
            self.kind = 'vstore'; self.r = allr(0); self.cnt = 'vm'
            self.wide_store = ('x3' in op or 'x4' in op)
            if self.wide_store:
                self.dregs = R(0) if op.startswith('buffer') else R(1)
        elif op.startswith('buffer_wbl2') or op.startswith('buffer_inv'):
            self.kind = 'vstore'; self.cnt = 'vm'
        elif op.startswith('s_load') or op.startswith('s_memtime') or op.startswith('s_memrealtime'):
            self.kind = 'smem'; self.w = R(0); self.r = allr(1); self.cnt = 'sm'
        elif op == 's_waitcnt':
            self.kind = 'wait'
        elif op == 's_nop':
            self.kind = 'nop'; self.nop = int(ops[0], 0) + 1
        elif op in ('s_barrier', 's_endpgm', 's_setprio', 's_sleep', 's_branch') or op.startswith('s_cbranch'):
            self.kind = 'ctl'
            if op in ('s_cbranch_vccz', 's_cbranch_vccnz'): self.r = list(VCC)
            if op in ('s_cbranch_execz', 's_cbranch_execnz'): self.r = list(EXEC)
        elif op.startswith('s_cmp') or op.startswith('s_bitcmp'):
            self.kind = 'salu'; self.r = allr(0)
        elif op.startswith('s_'):
            self.kind = 'salu'; self.w = R(0); self.r = allr(1)
            if 'saveexec' in op: self.w = self.w + EXEC; self.r = self.r + EXEC
            if op in ('s_addk_i32', 's_mulk_i32'): self.r = self.r + R(0)
        elif op.startswith('v_'):
            self.kind = 'trans' if base in TRANS else 'valu'
            if op.startswith('v_cmpx'):
                self.w = R(0) + EXEC; self.r = allr(1)
            elif op.startswith('v_cmp'):
                self.w = R(0); self.r = allr(1)
            elif 'permlane' in op and 'swap' in op:
                self.w = R(0) + R(1); self.r = R(0) + R(1); self.kind = 'perm'
            elif base in ('v_readfirstlane_b32', 'v_readlane_b32'):
                self.w = R(0); self.r = allr(1); self.kind = 'rdlane'
            elif base in ('v_fmac_f32', 'v_fmac_f16', 'v_dot2c_f32_bf16', 'v_writelane_b32', 'v_pk_fmac_f16'):
                self.w = R(0); self.r = allr(0)
            elif base in ('v_add_co_u32', 'v_sub_co_u32', 'v_subrev_co_u32'):
                self.w = R(0) + R(1); self.r = allr(2)
            elif base in ('v_addc_co_u32', 'v_subb_co_u32'):
                self.w = R(0) + R(1); self.r = allr(2)
            else:
                self.w = R(0); self.r = allr(1)
                if base == 'v_cndmask_b32' and len(ops) == 3: self.r = self.r + VCC
            if 'dpp' in op or 'row_' in mods or 'quad_perm' in mods or 'wave_' in mods:
                self.dpp = True
                if 'bound_ctrl' not in mods or 'row_mask' in mods:
                    self.r = self.r + R(0)
            if 'dst_sel' in mods or ('op_sel' in mods and 'cvt' in op): self.r = self.r + R(0)
        else:
            raise ValueError("unknown instruction: " + text)

class Prog:
    def __init__(self, name):
        self.name = name
        self.items = []
        self.vmq = []; self.lgq = []
        self.uid = 0
    def __call__(self, text, tag=None):
        for ln in text.split('\n'):
            ln = ln.strip()
            if not ln: continue
            ins = Ins(ln, tag)
            self.items.append(ins)
            if ins.op == 's_endpgm': self.vmq = []; self.lgq = []
            if ins.cnt == 'vm': self.vmq.append(tag)
            elif ins.cnt == 'lg': self.lgq.append(tag)
            elif ins.cnt == 'sm': self.lgq.append('__smem__')
            elif ins.kind == 'wait':
                m = re.search(r'vmcnt\((\d+)\)', ln)
                if m:
                    n = int(m.group(1)); self.vmq = self.vmq[len(self.vmq) - n:] if n < len(self.vmq) else self.vmq
                    if n == 0: self.vmq = []
                m = re.search(r'lgkmcnt\((\d+)\)', ln)
                if m:
                    n = int(m.group(1)); self.lgq = self.lgq[len(self.lgq) - n:] if n < len(self.lgq) else self.lgq
                    if n == 0: self.lgq = []
        return self
    def label(self, n): self.items.append(('label', n))
    def raw(self, t): self.items.append(('raw', t))
    def comment(self, t): self.items.append(('raw', '; ' + t))
    def newlabel(self, base):
        self.uid += 1; return f"{self.name}_{base}_{self.uid}"
    def loop_begin(self, lab): self.items.append(('loop_begin', lab)); self.label(lab)
    def loop_end(self): self.items.append(('loop_end',))
    def _n(self, q, tags):
        if isinstance(tags, str): tags = (tags,)
        idx = -1
        for i, t in enumerate(q):
            if t in tags: idx = i
        if idx < 0: return None
        return len(q) - 1 - idx
    def wait_vm(self, *tags):
        n = self._n(self.vmq, tags)
        if n is None: return
        assert n <= 63, n
        self(f"s_waitcnt vmcnt({n})")
    def wait_lg(self, *tags):
        n = self._n(self.lgq, tags)
        if n is None: return
        if '__smem__' in self.lgq: n = 0
        n = min(n, 15)
        self(f"s_waitcnt lgkmcnt({n})")
    def text(self):
        out = []
        for it in self.items:
            if isinstance(it, Ins): out.append('    ' + it.text)
            elif it[0] == 'label': out.append(it[1] + ':')
            elif it[0] == 'raw': out.append(it[1])
        return '\n'.join(out)
    def ninstr(self): return sum(isinstance(i, Ins) for i in self.items)

    def linear(self, reps=3):
        def expand(items):
            out = []; i = 0
            while i < len(items):
                it = items[i]
                if isinstance(it, tuple) and it[0] == 'loop_begin':
                    depth = 1; j = i + 1
                    while depth:
                        if isinstance(items[j], tuple):
                            if items[j][0] == 'loop_begin': depth += 1
                            elif items[j][0] == 'loop_end': depth -= 1
                        j += 1
                    body = expand(items[i + 1:j - 1])
                    out += body * reps
                    i = j
                else:
                    if isinstance(it, Ins): out.append(it)
                    i += 1
            return out
        return expand(self.items)

    def check(self, verbose=True):
        seq = self.linear()
        errs = []
        vmq = []; lgq = []
        last_w = {}
        last_cread = {}
        last_store = {}
        pos = 0
        def err(msg, ins, other=None):
            errs.append(f"{self.name}: {msg}: [{ins.text}]" + (f" after [{other.text}]" if other else ''))
        for ins in seq:
            k = ins.kind
            if k == 'wait':
                m = re.search(r'vmcnt\((\d+)\)', ins.text)
                if m:
                    n = int(m.group(1)); vmq = vmq[max(0, len(vmq) - n):] if n else []
                m = re.search(r'lgkmcnt\((\d+)\)', ins.text)
                if m:
                    n = int(m.group(1))
                    if n == 0: lgq = []
                    else:
                        if any(e[1].kind == 'smem' for e in lgq): pass
                        else: lgq = lgq[max(0, len(lgq) - n):]
                pos += 1; continue
            if k == 'nop':
                pos += ins.nop; continue
            if ins.op == 's_endpgm':
                vmq = []; lgq = []; last_w = {}; last_cread = {}; last_store = {}; pos += 1; continue
            touched = set(ins.r) | set(ins.w)
            if ins.tag == 'nochk': touched = set(ins.r)
            for q in (vmq, lgq):
                for regs, li in q:
                    hit = regs & touched
                    if hit:
                        err(f"use of reg {sorted(hit, key=str)[:2]} with outstanding load", ins, li)
            if len(vmq) > 63 and ins.cnt == 'vm': err("more than 63 vm outstanding", ins)
            isvalu = k in ('valu', 'trans', 'perm', 'rdlane')
            for reg in ins.r:
                lw = last_w.get(reg)
                if not lw: continue
                d = pos - lw[0] - 1; p = lw[1]; need = 0
                pv = p.kind in ('valu', 'trans', 'perm', 'rdlane')
                if p.kind == 'mfma':
                    if k == 'mfma':
                        if reg in ins.cregs and reg not in [x for x in ins.r[:0]]:
                            same = (ins.cregs == p.dregs and ins.passes == p.passes)
                            isab = reg in (ins.r[:len(ins.r) - len(ins.cregs)])
                            if isab: need = p.passes + 4
                            elif same: need = 0
                            else: need = p.passes + 2
                        else: need = p.passes + 4
                    else: need = p.passes + 4
                elif pv and reg[0] in 'va':
                    if k == 'mfma': need = 2
                    elif k == 'perm': need = 2
                    elif k == 'rdlane': need = 1
                    elif ins.dpp and isvalu: need = 2
                    elif p.kind == 'trans' and isvalu and k != 'trans': need = 1
                    elif p.kind == 'trans' and k in ('vload', 'vstore', 'dma', 'ds_read', 'ds_write'): need = 1
                elif pv and reg[0] == 's':
                    if k in ('vload', 'vstore', 'dma'): need = 5
                    elif isvalu: need = 2 if not (k == 'rdlane') else 4
                    elif k == 'smem': need = 1
                    if reg[1] in ('exec_lo', 'exec_hi'): need = max(need, 4)
                elif p.kind == 'salu' and reg == ('s', 'm0') and k == 'dma': need = 1
                if d < need:
                    err(f"hazard RAW {reg} dist {d} < {need}", ins, p)
            for reg in ins.w:
                lw = last_w.get(reg)
                if lw and lw[1].kind == 'mfma' and k != 'mfma':
                    d = pos - lw[0] - 1
                    if d < lw[1].passes + 4: err(f"hazard WAW after mfma {reg} dist {d}", ins, lw[1])
                if lw and lw[1].kind == 'mfma' and k == 'mfma' and reg not in ins.cregs:
                    d = pos - lw[0] - 1
                    if d < lw[1].passes + 2: err(f"hazard mfma WAW (D!=C) {reg} dist {d}", ins, lw[1])
                cr = last_cread.get(reg)
                if cr and isvalu:
                    d = pos - cr[0] - 1
                    need = 7 if cr[1].passes == 8 else 3
                    if d < need: err(f"hazard WAR srcC {reg} dist {d} < {need}", ins, cr[1])
                st = last_store.get(reg)
                if st and k not in ('vstore',):
                    d = pos - st[0] - 1
                    need = 2 if isvalu else 1
                    if d < need: err(f"hazard store-data WAR {reg} dist {d}", ins, st[1])
            for reg in ins.w:
                last_w[reg] = (pos, ins)
            if k == 'mfma':
                for reg in ins.cregs: last_cread[reg] = (pos, ins)
            if ins.wide_store:
                for reg in ins.dregs: last_store[reg] = (pos, ins)
            if ins.cnt == 'vm':
                vmq.append((set(ins.w) if k == 'vload' else set(), ins))
            elif ins.cnt in ('lg', 'sm'):
                lgq.append((set(ins.w), ins))
            pos += 1
        seen = set(); out = []
        for e in errs:
            if e not in seen: seen.add(e); out.append(e)
        if verbose:
            for e in out[:40]: print("CHECK:", e)
        return out

    def max_regs(self):
        mv = ma = ms = -1
        for it in self.items:
            if isinstance(it, Ins):
                for t, n in list(it.r) + list(it.w):
                    if isinstance(n, int):
                        if t == 'v': mv = max(mv, n)
                        elif t == 'a': ma = max(ma, n)
                        elif t == 's': ms = max(ms, n)
        return mv + 1, ma + 1, ms + 1

def vr(a, n=1): return f"v{a}" if n == 1 else f"v[{a}:{a+n-1}]"
def ar(a, n=1): return f"a{a}" if n == 1 else f"a[{a}:{a+n-1}]"
def sr(a, n=1): return f"s{a}" if n == 1 else f"s[{a}:{a+n-1}]"

def descriptor(name, vg, ag, sg):
    acc = max(4, (vg + 3) // 4 * 4)
    tot = acc + ag if ag else max(vg, 1)
    return f""".amdhsa_kernel {name}
  .amdhsa_next_free_vgpr {tot}
  .amdhsa_next_free_sgpr {max(sg, 16)}
  .amdhsa_accum_offset {acc}
  .amdhsa_group_segment_fixed_size 0
  .amdhsa_kernarg_size 120
  .amdhsa_user_sgpr_count 2
  .amdhsa_user_sgpr_kernarg_segment_ptr 1
  .amdhsa_system_sgpr_workgroup_id_x 1
  .amdhsa_float_denorm_mode_32 3
.end_amdhsa_kernel"""
```

```python
from common import *
MF16 = "v_mfma_f32_16x16x32_bf16"

def wg_decode_ij(p, sI, sJ):
    p("s_and_b32 s40, s2, 7")
    p("s_lshr_b32 s41, s2, 3")
    p("s_lshl_b32 s40, s40, 2")
    p("s_and_b32 s42, s41, 3")
    p(f"s_add_u32 s{sI}, s40, s42")
    p(f"s_lshr_b32 s{sJ}, s41, 2")

def stats_reduce(p, regs, tmp):
    xlane_sum_16_32(p, regs, tmp)

def gen_splitk(phase):
    cfg = dict(
        p1=dict(S=128, n=32, D=5, X='O', W='FWO'),
        p2=dict(S=20, n=5, D=5, X='X2', W='FW1'),
        p3=dict(S=20, n=5, D=5, X='H1', W='FW2'),
        p5=dict(S=54, n=14, D=5, X='G', W='FW4'))[phase]
    S, n, D = cfg['S'], cfg['n'], cfg['D']
    p = Prog(f"{phase}_kernel")
    L = lambda x: f"{phase}_{x}"
    sI, sJ, sW = 33, 34, 32
    sX, sWt, sWS = 12, 16, 20
    sIN = 24
    sXo, sWo = 36, 37
    A0 = 0 + 16
    def acc(r, nt): return A0 + (r * 5 + nt) * 4
    XB = 96
    def Xf(st, r): return XB + ((st % D) * 4 + r) * 4
    def Wf(st, nt): return ((st % D) * 5 + nt) * 4
    vX = [1, 2, 3, 4]; vW0, vW4 = 5, 6; vE = 7; vE2 = 8
    EB = 176
    p("s_cmp_ge_u32 s2, 256")
    p(f"s_cbranch_scc1 {L('end')}")
    load_ptr(p, 4, 'ws')
    if phase == 'p1': load_ptr(p, 6, 'x')
    if phase == 'p5': load_ptr(p, 6, 'out')
    wave_id(p, sW, 10)
    wg_decode_ij(p, sI, sJ)
    p("v_and_b32 v9, 63, v0")
    p(f"v_lshlrev_b32 v{vW0}, 4, v9")
    p(f"v_add_u32 v{vW4}, 4096, v{vW0}")
    if phase != 'p3':
        for r in range(4):
            p(f"s_add_u32 s40, s{sW}, {r}")
            p(f"s_and_b32 s40, s40, 3")
            p(f"s_mul_i32 s40, s40, {S*1024}")
            p(f"v_add_u32 v{vX[r]}, s40, v{vW0}")
    else:
        p(f"s_and_b32 s40, s{sW}, 1")
        p(f"s_lshl_b32 s40, s40, 1")
        p(f"s_sub_u32 s40, s40, 1")
        p(f"s_lshr_b32 s41, s{sW}, 1")
        p(f"s_add_u32 s41, s41, 1")
        p(f"s_mul_i32 s40, s40, s41")
        p(f"s_lshl_b32 s41, s{sI}, 6")
        p(f"s_add_u32 s40, s40, s41")
        p("v_and_b32 v10, 15, v9")
        p("v_lshrrev_b32 v11, 4, v9")
        p("v_lshlrev_b32 v11, 8, v11")
        for r in range(4):
            p(f"s_add_u32 s41, s{sW}, {r}")
            p(f"s_and_b32 s41, s41, 3")
            p(f"s_lshl_b32 s41, s41, 4")
            p(f"s_add_u32 s41, s41, s40")
            p(f"v_add_u32 v12, s41, v10")
            p(f"v_ashrrev_i32 v13, 4, v12")
            p(f"v_mul_i32_i24 v13, 20480, v13")
            p(f"v_and_b32 v14, 15, v12")
            p(f"v_lshlrev_b32 v14, 4, v14")
            p(f"v_add3_u32 v13, v13, v14, v11")
            p(f"v_cmp_gt_i32 vcc, 0, v12")
            p(f"v_mov_b32 v14, 0x40000000")
            p("s_nop 0")
            p(f"v_cndmask_b32 v{vX[r]}, v13, v14, vcc")
    p("s_waitcnt lgkmcnt(0)")
    srd(p, sX, 4, SZ[cfg['X']], WS[cfg['X']])
    srd(p, sWt, 4, SZ[cfg['W']], WS[cfg['W']])
    srd(p, sWS, 4, WS['END'])
    if phase == 'p1': srd(p, sIN, 6, 2048*640*2)
    if phase == 'p5': srd(p, sIN, 6, 2048*640*2)
    p(f"s_mul_i32 s40, s{sW}, {n}")
    if phase == 'p3':
        p(f"s_lshl_b32 s{sXo}, s40, 10")
    else:
        p(f"s_mul_i32 s41, s{sI}, {4*S}")
        p(f"s_add_u32 s41, s41, s40")
        p(f"s_lshl_b32 s{sXo}, s41, 10")
    p(f"s_mul_i32 s41, s{sJ}, {S}")
    p(f"s_add_u32 s41, s41, s40")
    p(f"s_mul_i32 s{sWo}, s41, 5120")

    def issue(st):
        if phase == 'p5' and st >= 12:
            p(f"s_mul_i32 s40, s{sW}, 14")
            p(f"s_add_u32 s40, s40, {st}")
            p(f"s_cmp_lt_u32 s40, 54")
            p(f"s_cselect_b32 s42, s{sXo}, 0x40000000")
            p(f"s_cselect_b32 s43, s{sWo}, 0x40000000")
            sx, sw = 42, 43
        else: sx, sw = sXo, sWo
        for nt in range(5):
            a = Wf(st, nt)
            if nt < 4: p(f"buffer_load_dwordx4 a[{a}:{a+3}], v{vW0}, s[{sWt}:{sWt+3}], s{sw} offen offset:{nt*1024}", f"st{st}")
            else: p(f"buffer_load_dwordx4 a[{a}:{a+3}], v{vW4}, s[{sWt}:{sWt+3}], s{sw} offen", f"st{st}")
        for r in range(4):
            x = Xf(st, r)
            p(f"buffer_load_dwordx4 v[{x}:{x+3}], v{vX[r]}, s[{sX}:{sX+3}], s{sx} offen", f"st{st}")
        if st + 1 < n:
            p(f"s_add_u32 s{sXo}, s{sXo}, 1024")
            p(f"s_add_u32 s{sWo}, s{sWo}, 5120")

    for st in range(min(D, n)): issue(st)

    p("v_and_b32 v10, 15, v9")
    p("v_lshrrev_b32 v11, 4, v9")
    p(f"s_lshl_b32 s40, s{sI}, 6")
    p(f"s_lshl_b32 s41, s{sW}, 4")
    p(f"s_add_u32 s40, s40, s41")
    p("v_add_u32 v12, s40, v10")
    p(f"s_mul_i32 s44, s{sJ}, 80")
    p("v_lshlrev_b32 v13, 2, v11")
    p("v_add_u32 v13, s44, v13")
    p("v_lshlrev_b32 v14, 2, v13")
    def f_offsets(base_sreg, SS):
        p(f"s_lshl_b32 s40, s{sI}, 2")
        p(f"s_add_u32 s40, s40, s{sW}")
        p(f"s_mul_i32 s40, s40, {SS}")
        p(f"s_mul_i32 s41, s{sJ}, 5")
        for nt in range(5):
            p(f"s_add_u32 s42, s41, {nt}")
            p(f"s_lshr_b32 s43, s42, 1")
            p(f"s_add_u32 s43, s43, s40")
            p(f"s_lshl_b32 s43, s43, 10")
            p(f"s_and_b32 s42, s42, 1")
            p(f"s_lshl_b32 s42, s42, 3")
            p(f"s_add_u32 s{base_sreg+nt}, s43, s42")
    sF = 48
    f_offsets(sF, 20)
    def vec_load(dst, off):
        for nt in range(5):
            p(f"s_mov_b32 s47, {off}")
            p(f"buffer_load_dwordx4 v[{dst+4*nt}:{dst+4*nt+3}], v14, s[{sWS}:{sWS+3}], s47 offen offset:{nt*64}", "epi")
    def epi_loads():
        if phase == 'p1':
            p("v_mul_u32_u24 v15, 1280, v12")
            p("v_lshlrev_b32 v7, 1, v13")
            p("v_add_u32 v15, v15, v7")
            for nt in range(5):
                p(f"buffer_load_dwordx2 v[{EB+2*nt}:{EB+2*nt+1}], v15, s[{sIN}:{sIN+3}], 0 offen offset:{nt*32}", "epi")
            vec_load(EB + 10, WS['MOD'] + 2*640*4)
            vec_load(EB + 30, WS['MOD'] + 4*640*4)
            vec_load(EB + 50, WS['MOD'] + 3*640*4)
        elif phase == 'p2':
            p("v_lshlrev_b32 v15, 8, v12")
            p("v_lshlrev_b32 v7, 6, v11")
            p("v_add_u32 v15, v15, v7")
            p(f"s_mov_b32 s47, {WS['SP1']}")
            for k in range(4):
                p(f"buffer_load_dwordx4 v[{EB+4*k}:{EB+4*k+3}], v15, s[{sWS}:{sWS+3}], s47 offen offset:{16*k}", "epi")
            vec_load(EB + 16, WS['U1'])
            vec_load(EB + 36, WS['T1'])
            vec_load(EB + 56, WS['CS1'])
            p(f"s_add_u32 s6, s4, {WS['SCAL']}"); p("s_addc_u32 s7, s5, 0")
            p("s_load_dwordx4 s[56:59], s[6:7], 0")
            p("s_load_dword s60, s[6:7], 16")
        elif phase == 'p3':
            p("v_lshlrev_b32 v15, 8, v12")
            p("v_lshlrev_b32 v7, 6, v11")
            p("v_add_u32 v15, v15, v7")
            p(f"s_mov_b32 s47, {WS['SP1']}")
            for k in range(2):
                p(f"buffer_load_dwordx2 v[{EB+2*k}:{EB+2*k+1}], v15, s[{sWS}:{sWS+3}], s47 offen offset:{32*k}", "epi")
            for nt in range(5):
                p(f"s_add_u32 s47, s{sF+nt}, {WS['X2']}")
                p(f"buffer_load_dwordx2 v[{EB+4+2*nt}:{EB+5+2*nt}], v{vW0}, s[{sWS}:{sWS+3}], s47 offen", "epi")
            vec_load(EB + 14, WS['MOD'] + 4*640*4)
            vec_load(EB + 34, WS['MOD'] + 3*640*4)
        elif phase == 'p5':
            for nt in range(5):
                p(f"s_add_u32 s47, s{sF+nt}, {WS['X2']}")
                p(f"buffer_load_dwordx2 v[{EB+2*nt}:{EB+2*nt+1}], v{vW0}, s[{sWS}:{sWS+3}], s47 offen", "epi")
                p(f"s_add_u32 s46, s{sF+nt}, {WS['X1']}")
                p(f"buffer_load_dwordx2 v[{EB+10+2*nt}:{EB+11+2*nt}], v{vW0}, s[{sWS}:{sWS+3}], s46 offen", "epi")
            vec_load(EB + 20, WS['MOD'] + 5*640*4)


    for st in range(n):
        p.wait_vm(f"st{st}")
        for nt in range(5):
            for r in range(4):
                c_ = "0" if st == 0 else f"v[{acc(r,nt)}:{acc(r,nt)+3}]"
                p(f"{MF16} v[{acc(r,nt)}:{acc(r,nt)+3}], a[{Wf(st,nt)}:{Wf(st,nt)+3}], v[{Xf(st,r)}:{Xf(st,r)+3}], {c_}")
        if st == max(0, n - D): epi_loads()
        if st + D < n: issue(st + D)

    p("s_nop 7")
    p(f"v_lshlrev_b32 v7, 4, v9")
    for r in range(1, 4):
        p(f"s_add_u32 s40, s{sW}, {r}")
        p(f"s_and_b32 s40, s40, 3")
        p(f"s_mul_i32 s40, s40, 15360")
        p(f"s_add_u32 s40, s40, {(r-1)*5120}")
        p(f"v_add_u32 v8, s40, v7")
        for nt in range(5):
            p(f"ds_write_b128 v8, v[{acc(r,nt)}:{acc(r,nt)+3}] offset:{nt*1024}")
    p(f"s_mul_i32 s40, s{sW}, 15360")
    p(f"v_add_u32 v8, s40, v7")
    p("s_waitcnt lgkmcnt(0)")
    p("s_barrier")
    RB = acc(1, 0)
    for k in range(15):
        p(f"ds_read_b128 v[{RB+4*k}:{RB+4*k+3}], v8 offset:{k*1024}", f"red{k//5}")
    for k in range(3):
        p.wait_lg(f"red{k}")
        for e in range(20):
            p(f"v_add_f32 v{A0+e}, v{A0+e}, v{RB+20*k+e}")
    p.wait_vm("epi")
    T0 = RB
    U = XB
    if phase == 'p1':
        xr, ga, g, sb = EB, EB + 10, EB + 30, EB + 50
        for e in range(20): p(f"v_add_f32 v{g+e}, 1.0, v{g+e}")
        for e in range(0, 20, 2): p(f"v_cvt_pk_bf16_f32 v{T0+e//2}, v{g+e}, v{g+e+1}")
        for e in range(0, 20, 2):
            p(f"v_lshlrev_b32 v{g+e}, 16, v{T0+e//2}")
            p(f"v_and_b32 v{g+e+1}, 0xffff0000, v{T0+e//2}")
        for e in range(0, 20, 2):
            p(f"v_lshlrev_b32 v{U+e}, 16, v{xr+e//2}")
            p(f"v_and_b32 v{U+e+1}, 0xffff0000, v{xr+e//2}")
        for e in range(20): p(f"v_fma_f32 v{U+e}, v{A0+e}, v{ga+e}, v{U+e}")
        for e in range(0, 20, 2): p(f"v_cvt_pk_bf16_f32 v{T0+e//2}, v{U+e}, v{U+e+1}")
        for nt in range(5):
            p(f"s_add_u32 s47, s{sF+nt}, {WS['X2']}")
            p(f"buffer_store_dwordx2 v[{T0+2*nt}:{T0+2*nt+1}], v{vW0}, s[{sWS}:{sWS+3}], s47 offen")
        for e in range(0, 20, 2):
            p(f"v_lshlrev_b32 v{U+e}, 16, v{T0+e//2}")
            p(f"v_and_b32 v{U+e+1}, 0xffff0000, v{T0+e//2}")
        st_ = T0 + 12
        assert st_ % 2 == 0
        for q in range(6): p(f"v_mov_b32 v{st_+q}, 0")
        for e in range(20):
            y = U + 20 + e
            p(f"v_mul_f32 v{y}, v{U+e}, v{g+e}")
            p(f"v_add_f32 v{st_}, v{st_}, v{U+e}")
            p(f"v_fmac_f32 v{st_+1}, v{U+e}, v{U+e}")
            p(f"v_add_f32 v{st_+2}, v{st_+2}, v{y}")
            p(f"v_fmac_f32 v{st_+3}, v{y}, v{g+e}")
            p(f"v_fmac_f32 v{st_+4}, v{y}, v{y}")
            p(f"v_fmac_f32 v{st_+5}, v{y}, v{sb+e}")
        stats_reduce(p, [st_+q for q in range(6)], T0 + 20)
        p("v_lshlrev_b32 v15, 8, v12")
        p(f"s_lshl_b32 s40, s{sJ}, 5")
        p(f"s_add_u32 s40, s40, {WS['SP1']}")
        p("v_cmp_gt_u32 vcc, 16, v9")
        p("s_and_saveexec_b64 s[42:43], vcc")
        p(f"buffer_store_dwordx4 v[{st_}:{st_+3}], v15, s[{sWS}:{sWS+3}], s40 offen")
        p(f"buffer_store_dwordx2 v[{st_+4}:{st_+5}], v15, s[{sWS}:{sWS+3}], s40 offen offset:16")
    elif phase == 'p2':
        sp = EB
        for q in range(6):
            src = sp + q if q < 4 else sp + 4 + (q - 4)
            p(f"v_add_f32 v{T0+q}, v{src}, v{src+8}")
        stats_reduce(p, [T0+q for q in range(6)], T0 + 8)
        S1, S2, Sy, Syg, Syy, Sys = [T0+q for q in range(6)]
        mu1, r1, mu2, r2, t = T0+8, T0+9, T0+10, T0+11, T0+12
        sSg, sSgg, sSgs, sSs, sSss = 56, 57, 58, 59, 60
        invD = fhex(1/640)
        p("s_waitcnt lgkmcnt(0)")
        p(f"v_mul_f32 v{mu1}, {invD}, v{S1}")
        p(f"v_mul_f32 v{r1}, {invD}, v{S2}")
        p(f"v_fma_f32 v{r1}, -v{mu1}, v{mu1}, v{r1}")
        p(f"v_add_f32 v{r1}, {fhex(1e-5)}, v{r1}")
        p(f"v_rsq_f32 v{r1}, v{r1}")
        p(f"v_fma_f32 v{t}, -v{mu1}, s{sSg}, v{Sy}")
        p(f"v_mul_f32 v{mu2}, v{r1}, v{t}")
        p(f"v_add_f32 v{mu2}, s{sSs}, v{mu2}")
        p(f"v_mul_f32 v{mu2}, {invD}, v{mu2}")
        p(f"v_mul_f32 v{t}, s{sSgg}, v{mu1}")
        p(f"v_fma_f32 v{t}, -2.0, v{Syg}, v{t}")
        p(f"v_fma_f32 v{t}, v{t}, v{mu1}, v{Syy}")
        p(f"v_mul_f32 v{t}, v{t}, v{r1}")
        p(f"v_fma_f32 v{t+1}, -v{mu1}, s{sSgs}, v{Sys}")
        p(f"v_fma_f32 v{t}, 2.0, v{t+1}, v{t}")
        p(f"v_mul_f32 v{t}, v{t}, v{r1}")
        p(f"v_add_f32 v{t}, s{sSss}, v{t}")
        p(f"v_mul_f32 v{t}, {invD}, v{t}")
        p(f"v_fma_f32 v{r2}, -v{mu2}, v{mu2}, v{t}")
        p(f"v_add_f32 v{r2}, {fhex(1e-5)}, v{r2}")
        p(f"v_rsq_f32 v{r2}, v{r2}")
        p("s_nop 0")
        al, be, de = T0+14, T0+15, T0+16
        p(f"v_mul_f32 v{al}, v{r2}, v{r1}")
        p(f"v_mul_f32 v{be}, v{al}, v{mu1}")
        p(f"v_sub_f32 v{be}, 0, v{be}")
        p(f"v_mul_f32 v{de}, v{r2}, v{mu2}")
        p(f"v_sub_f32 v{de}, 0, v{de}")
        u1, t1, cs1 = EB + 16, EB + 36, EB + 56
        for e in range(20): p(f"v_mul_f32 v{A0+e}, v{A0+e}, v{al}")
        for e in range(20): p(f"v_fmac_f32 v{A0+e}, v{be}, v{u1+e}")
        for e in range(20): p(f"v_fmac_f32 v{A0+e}, v{r2}, v{t1+e}")
        for e in range(20): p(f"v_fmac_f32 v{A0+e}, v{de}, v{cs1+e}")
        p(f"v_mov_b32 v{T0+18}, {fhex(GELU_C1)}"); p(f"v_mov_b32 v{T0+19}, {fhex(GELU_C2)}")
        gelu_block(p, [A0+e for e in range(20)], [U+e for e in range(20)], T0+18, T0+19)
        for e in range(0, 20, 2): p(f"v_cvt_pk_bf16_f32 v{U+20+e//2}, v{A0+e}, v{A0+e+1}")
        for nt in range(5):
            p(f"s_add_u32 s47, s{sF+nt}, {WS['H1']}")
            p(f"buffer_store_dwordx2 v[{U+20+2*nt}:{U+21+2*nt}], v{vW0}, s[{sWS}:{sWS+3}], s47 offen")
    elif phase == 'p3':
        sp, x2r, g, sb = EB, EB + 4, EB + 14, EB + 34
        p(f"v_add_f32 v{T0}, v{sp}, v{sp+2}")
        p(f"v_add_f32 v{T0+1}, v{sp+1}, v{sp+3}")
        stats_reduce(p, [T0, T0+1], T0 + 8)
        mu1, r1 = T0+2, T0+3
        invD = fhex(1/640)
        p(f"v_mul_f32 v{mu1}, {invD}, v{T0}")
        p(f"v_mul_f32 v{r1}, {invD}, v{T0+1}")
        p(f"v_fma_f32 v{r1}, -v{mu1}, v{mu1}, v{r1}")
        p(f"v_add_f32 v{r1}, {fhex(1e-5)}, v{r1}")
        p(f"v_rsq_f32 v{r1}, v{r1}")
        for e in range(20): p(f"v_add_f32 v{g+e}, 1.0, v{g+e}")
        for e in range(0, 20, 2): p(f"v_cvt_pk_bf16_f32 v{T0+10+e//2}, v{g+e}, v{g+e+1}")
        for e in range(0, 20, 2):
            p(f"v_lshlrev_b32 v{g+e}, 16, v{T0+10+e//2}")
            p(f"v_and_b32 v{g+e+1}, 0xffff0000, v{T0+10+e//2}")
        for e in range(0, 20, 2):
            p(f"v_lshlrev_b32 v{U+e}, 16, v{x2r+e//2}")
            p(f"v_and_b32 v{U+e+1}, 0xffff0000, v{x2r+e//2}")
        for e in range(20): p(f"v_sub_f32 v{U+e}, v{U+e}, v{mu1}")
        for e in range(20): p(f"v_mul_f32 v{U+e}, v{U+e}, v{r1}")
        for e in range(20): p(f"v_fma_f32 v{U+e}, v{U+e}, v{g+e}, v{sb+e}")
        for e in range(20): p(f"v_add_f32 v{U+e}, v{U+e}, v{A0+e}")
        for e in range(0, 20, 2): p(f"v_cvt_pk_bf16_f32 v{T0+10+e//2}, v{U+e}, v{U+e+1}")
        for nt in range(5):
            p(f"s_add_u32 s47, s{sF+nt}, {WS['X1']}")
            p(f"buffer_store_dwordx2 v[{T0+10+2*nt}:{T0+11+2*nt}], v{vW0}, s[{sWS}:{sWS+3}], s47 offen")
        for e in range(0, 20, 2):
            p(f"v_lshlrev_b32 v{U+e}, 16, v{T0+10+e//2}")
            p(f"v_and_b32 v{U+e+1}, 0xffff0000, v{T0+10+e//2}")
        st_ = T0 + 4
        p(f"v_mov_b32 v{st_}, 0"); p(f"v_mov_b32 v{st_+1}, 0")
        for e in range(20):
            p(f"v_add_f32 v{st_}, v{st_}, v{U+e}")
            p(f"v_fmac_f32 v{st_+1}, v{U+e}, v{U+e}")
        stats_reduce(p, [st_, st_+1], T0 + 24)
        p("v_lshlrev_b32 v15, 6, v12")
        p(f"s_lshl_b32 s40, s{sJ}, 3")
        p(f"s_add_u32 s40, s40, {WS['SP3']}")
        p("v_cmp_gt_u32 vcc, 16, v9")
        p("s_and_saveexec_b64 s[42:43], vcc")
        p(f"buffer_store_dwordx2 v[{st_}:{st_+1}], v15, s[{sWS}:{sWS+3}], s40 offen")
    elif phase == 'p5':
        x2r, x1r, gb = EB, EB + 10, EB + 20
        for e in range(0, 20, 2):
            p(f"v_lshlrev_b32 v{U+e}, 16, v{x1r+e//2}")
            p(f"v_and_b32 v{U+e+1}, 0xffff0000, v{x1r+e//2}")
            p(f"v_lshlrev_b32 v{U+20+e}, 16, v{x2r+e//2}")
            p(f"v_and_b32 v{U+21+e}, 0xffff0000, v{x2r+e//2}")
        for e in range(20): p(f"v_add_f32 v{U+e}, v{U+e}, v{A0+e}")
        for e in range(20): p(f"v_fma_f32 v{U+e}, v{U+e}, v{gb+e}, v{U+20+e}")
        for e in range(0, 20, 2): p(f"v_cvt_pk_bf16_f32 v{T0+e//2}, v{U+e}, v{U+e+1}")
        p("v_mul_u32_u24 v15, 1280, v12")
        p("v_lshlrev_b32 v7, 1, v13")
        p("v_add_u32 v15, v15, v7")
        for nt in range(5):
            p(f"buffer_store_dwordx2 v[{T0+2*nt}:{T0+2*nt+1}], v15, s[{sIN}:{sIN+3}], 0 offen offset:{nt*32}")
    p.label(L('end'))
    p("s_endpgm")
    return p

def gen_p4():
    p = Prog("p4_kernel")
    L = lambda x: f"p4_{x}"
    sI2, sJ2, sW = 33, 34, 32
    sX, sWt, sWS = 12, 16, 20
    A0 = 16
    def acc(r, nt): return A0 + (r * 7 + nt) * 4
    def Xf(s, r): return (s * 2 + r) * 4
    def Wf(s, nt): return 160 + ((s & 1) * 7 + nt) * 4
    vW0, vX0, vX1, vLA = 1, 2, 3, 4
    CS = 72
    SPR = 100
    p("s_cmp_ge_u32 s2, 256")
    p(f"s_cbranch_scc1 {L('end')}")
    load_ptr(p, 4, 'ws')
    wave_id(p, sW, 10)
    p("s_and_b32 s40, s2, 7")
    p("s_lshr_b32 s41, s2, 3")
    p("s_lshl_b32 s40, s40, 1")
    p("s_and_b32 s42, s41, 1")
    p(f"s_add_u32 s{sI2}, s40, s42")
    p(f"s_lshr_b32 s{sJ2}, s41, 1")
    p("v_and_b32 v9, 63, v0")
    p(f"v_lshlrev_b32 v{vW0}, 4, v9")
    p(f"v_mov_b32 v{vX0}, v{vW0}")
    p(f"v_add_u32 v{vX1}, {20*1024}, v{vW0}")
    p("s_waitcnt lgkmcnt(0)")
    srd(p, sX, 4, SZ['X1'], WS['X1'])
    srd(p, sWt, 4, SZ['FW3'], WS['FW3'])
    srd(p, sWS, 4, WS['END'])
    p(f"s_lshl_b32 s40, s{sI2}, 3")
    p(f"s_lshl_b32 s41, s{sW}, 1")
    p(f"s_add_u32 s44, s40, s41")
    p(f"s_mul_i32 s36, s44, 20480")
    p(f"s_mul_i32 s40, s{sW}, 9216")
    p(f"s_mul_i32 s37, s{sJ2}, 143360")
    p(f"s_add_u32 s37, s37, s40")
    p(f"s_mov_b32 s38, s40")
    def issue_group(G):
        for m in range(3):
            p(f"s_add_u32 m0, s38, {G*35840 + m*4096}")
            p(f"s_add_u32 s39, s37, {G*35840 + m*4096}")
            for i in range(4 if m < 2 else 1):
                p(f"buffer_load_dwordx4 v{vW0}, s[{sWt}:{sWt+3}], s39 offen offset:{i*1024} lds", f"g{G}")
        for s in range(5*G, 5*G+5):
            if (s & 3) == 0 or s == 5*G:
                p(f"s_add_u32 s45, s36, {(s >> 2) * 4096}")
            for r in range(2):
                p(f"buffer_load_dwordx4 a[{Xf(s,r)}:{Xf(s,r)+3}], v{vX0 if r == 0 else vX1}, s[{sX}:{sX+3}], s45 offen offset:{(s & 3)*1024}", f"g{G}")
    for G in range(3): issue_group(G)
    def epi4():
        p("v_and_b32 v10, 15, v9")
        p("v_lshrrev_b32 v11, 4, v9")
        p(f"s_mul_i32 s46, s{sJ2}, 7")
        p(f"s_min_u32 s46, s46, 101")
        p(f"s_lshl_b32 s40, s46, 6")
        p(f"s_add_u32 s40, s40, {WS['CS3']}")
        p("v_lshlrev_b32 v12, 4, v11")
        for nt in range(7):
            p(f"buffer_load_dwordx4 v[{CS+4*nt}:{CS+4*nt+3}], v12, s[{sWS}:{sWS+3}], s40 offen offset:{nt*64}", "epi")
        p(f"s_lshl_b32 s40, s44, 4")
        p("v_add_u32 v13, s40, v10")
        p("v_lshlrev_b32 v13, 6, v13")
        p("v_lshlrev_b32 v14, 4, v11")
        p("v_add_u32 v13, v13, v14")
        p(f"s_mov_b32 s40, {WS['SP3']}")
        for r in range(2):
            p(f"buffer_load_dwordx4 v[{SPR+4*r}:{SPR+4*r+3}], v13, s[{sWS}:{sWS+3}], s40 offen offset:{r*1024}", "epi")
    p(f"v_mov_b32 v{vLA}, v{vW0}")
    p(f"v_add_u32 v5, 65536, v{vW0}")
    p(f"v_add_u32 v6, 131072, v{vW0}")
    def w_read(s, nt):
        off = (s * 7 + nt) * 1024
        base = [vLA, 5, 6][off >> 16]
        return f"ds_read_b128 a[{Wf(s,nt)}:{Wf(s,nt)+3}], v{base} offset:{off & 0xffff}"
    for G in range(4):
        p.wait_vm(f"g{G}")
        p("s_barrier")
        if G == 0: epi4()
        if G == 1: issue_group(3)
        for nt in range(7): p(w_read(5*G, nt), f"w{5*G}")
        for s in range(5*G, 5*G+5):
            p.wait_lg(f"w{s}")
            k = 0
            for nt in range(7):
                for r in range(2):
                    c_ = "0" if s == 0 else f"v[{acc(r,nt)}:{acc(r,nt)+3}]"
                    p(f"{MF16} v[{acc(r,nt)}:{acc(r,nt)+3}], a[{Wf(s,nt)}:{Wf(s,nt)+3}], a[{Xf(s,r)}:{Xf(s,r)+3}], {c_}")
                    if s + 1 < 5*G+5 and k < 7: p(w_read(s + 1, k), f"w{s+1}")
                    k += 1
    p.wait_vm("epi")
    T0 = 108
    invD = fhex(1/640)
    for r in range(2):
        p(f"v_add_f32 v{T0+2*r}, v{SPR+4*r}, v{SPR+4*r+2}")
        p(f"v_add_f32 v{T0+2*r+1}, v{SPR+4*r+1}, v{SPR+4*r+3}")
    stats_reduce(p, [T0, T0+1, T0+2, T0+3], T0 + 8)
    for r in range(2):
        mu, rs = T0+4+2*r, T0+5+2*r
        p(f"v_mul_f32 v{mu}, {invD}, v{T0+2*r}")
        p(f"v_mul_f32 v{rs}, {invD}, v{T0+2*r+1}")
        p(f"v_fma_f32 v{rs}, -v{mu}, v{mu}, v{rs}")
        p(f"v_add_f32 v{rs}, {fhex(1e-5)}, v{rs}")
        p(f"v_rsq_f32 v{rs}, v{rs}")
    p(f"v_mov_b32 v{T0+16}, {fhex(GELU_C1)}"); p(f"v_mov_b32 v{T0+17}, {fhex(GELU_C2)}")
    U = 130
    for r in range(2):
        mu, rs = T0+4+2*r, T0+5+2*r
        xs = [acc(r, 0) + e for e in range(28)]
        for e in range(28): p(f"v_fma_f32 v{xs[e]}, -v{mu}, v{CS+e}, v{xs[e]}")
        for e in range(28): p(f"v_mul_f32 v{xs[e]}, v{xs[e]}, v{rs}")
        gelu_block(p, xs, [U+e for e in range(28)], T0+16, T0+17)
        for e in range(0, 28, 2): p(f"v_cvt_pk_bf16_f32 v{U+30+14*r+e//2}, v{xs[e]}, v{xs[e+1]}")
        for nt in range(7):
            p(f"s_add_u32 s40, s46, {nt}")
            p(f"s_lshr_b32 s41, s40, 1")
            p(f"s_add_u32 s42, s44, {r}")
            p(f"s_mul_i32 s42, s42, 54")
            p(f"s_add_u32 s41, s41, s42")
            p(f"s_lshl_b32 s41, s41, 10")
            p(f"s_and_b32 s40, s40, 1")
            p(f"s_lshl_b32 s40, s40, 3")
            p(f"s_add_u32 s41, s41, s40")
            p(f"s_add_u32 s41, s41, {WS['G']}")
            o = U + 30 + 14 * r + 2 * nt
            p(f"buffer_store_dwordx2 v[{o}:{o+1}], v{vW0}, s[{sWS}:{sWS+3}], s41 offen")
    p.label(L('end'))
    p("s_endpgm")
    return p
```

```python
from common import *

def gemv_setup(p, sW, rs, sBlk):
    p("v_and_b32 v2, 63, v0")
    p("v_lshrrev_b32 v3, 3, v2")
    p("v_and_b32 v4, 7, v2")
    p(f"s_mul_i32 s21, s17, 160")
    p("v_add_u32 v5, s21, v3")
    p(f"s_mov_b32 s22, {rs}")
    p("v_mul_lo_u32 v1, v5, s22")
    p("v_lshlrev_b32 v4, 4, v4")
    p("v_add_u32 v1, v1, v4")
    p(f"s_lshl_b32 s20, s{sBlk}, 7")

def gemv_issue(p, sW, rs, base):
    for i in range(20):
        p(f"buffer_load_dwordx4 v[{base+4*i}:{base+4*i+3}], v1, s[{sW}:{sW+3}], s20 offen", 'w')
        if i < 19: p(f"s_add_u32 s20, s20, {8*rs}")

def gemv_reduce_store(p, accs, nout, sOut, out_off_sreg, round_bf16):
    flat = [r for a in accs for r in a]
    p("s_nop 1")
    for r in flat: p(f"v_add_f32_dpp v{r}, v{r}, v{r} row_ror:8 row_mask:0xf bank_mask:0xf")
    xlane_sum_16_32(p, flat, 200)
    p("v_and_b32 v2, 63, v0")
    p("v_lshlrev_b32 v6, 5, v2")
    p("s_lshl_b32 s21, s17, 8")
    p("v_add_u32 v6, s21, v6")
    p("v_cmp_gt_u32 vcc, 8, v2")
    p("s_and_saveexec_b64 s[24:25], vcc")
    for o, a in enumerate(accs):
        assert a[0] % 2 == 0 and a == list(range(a[0], a[0] + 8))
        p(f"ds_write_b128 v6, v[{a[0]}:{a[0]+3}] offset:{o*1024}")
        p(f"ds_write_b128 v6, v[{a[4]}:{a[4]+3}] offset:{o*1024+16}")
    p("s_mov_b64 exec, s[24:25]")
    p("s_waitcnt lgkmcnt(0)")
    p("s_barrier")
    p("v_cmp_gt_u32 vcc, 64, v0")
    p("s_and_saveexec_b64 s[24:25], vcc")
    lab = p.newlabel("skip")
    p(f"s_cbranch_execz {lab}")
    p("v_lshlrev_b32 v6, 2, v0")
    for o in range(nout):
        for w in range(4):
            p(f"ds_read_b32 v{8+4*o+w}, v6 offset:{o*1024+w*256}")
    p("s_waitcnt lgkmcnt(0)")
    for o in range(nout):
        b = 8 + 4 * o
        p(f"v_add_f32 v{b}, v{b}, v{b+1}")
        p(f"v_add_f32 v{b+2}, v{b+2}, v{b+3}")
        p(f"v_add_f32 v{b}, v{b}, v{b+2}")
        if round_bf16:
            p(f"v_cvt_pk_bf16_f32 v{b}, v{b}, v{b}")
            p(f"v_and_b32 v{b}, 0xffff0000, v{b}")
        p(f"buffer_store_dword v{b}, v6, s[{sOut}:{sOut+3}], s{out_off_sreg[o]} offen")
    p.label(lab)
    p("s_endpgm")

def pretile_wave(p, sSrc, rs, nb_count, magic_nb, S, width, dst_off, wo_map, sWS, sU, scale=False, name=""):
    p("v_and_b32 v2, 63, v0")
    p("v_lshrrev_b32 v3, 3, v2")
    p(f"s_mov_b32 s22, {rs}")
    p("v_mul_lo_u32 v1, v3, s22")
    p("v_and_b32 v4, 7, v2")
    p("v_lshlrev_b32 v4, 4, v4")
    p("v_add_u32 v1, v1, v4")
    p("s_lshl_b32 s23, s17, 14")
    for u in range(4):
        p(f"s_add_u32 s24, s{sU}, {u}")
        p(f"s_mul_hi_u32 s25, s24, {magic_nb}")
        p(f"s_mul_i32 s26, s25, {nb_count}")
        p(f"s_sub_u32 s26, s24, s26")
        p(f"s_mov_b32 s{30+2*u}, s25")
        p(f"s_mov_b32 s{31+2*u}, s26")
        p(f"s_mul_i32 s27, s25, {32*rs}")
        p(f"s_lshl_b32 s28, s26, 7")
        p(f"s_add_u32 s27, s27, s28")
        for i in range(4):
            p(f"s_add_u32 m0, s23, {u*4096+i*1024}")
            p(f"s_add_u32 s28, s27, {i*8*rs}")
            p(f"buffer_load_dwordx4 v1, s[{sSrc}:{sSrc+3}], s28 offen lds", f'u{u}')
    p("v_lshrrev_b32 v3, 4, v2")
    p("v_bfe_u32 v4, v2, 2, 2")
    p("v_and_b32 v5, 3, v2")
    if wo_map: p("v_lshlrev_b32 v3, 3, v3")
    else:      p("v_lshlrev_b32 v3, 2, v3")
    p("v_add_u32 v3, v3, v4")
    p("v_lshlrev_b32 v3, 7, v3")
    p("v_lshlrev_b32 v5, 3, v5")
    p("v_add_u32 v3, v3, v5")
    p("v_add_u32 v3, s23, v3")
    toff = 512 if wo_map else 2048
    p("v_lshlrev_b32 v6, 4, v2")
    if scale:
        p("v_lshrrev_b32 v7, 4, v2")
        p("v_lshlrev_b32 v7, 4, v7")
    for u in range(4):
        p.wait_vm(f'u{u}')
        for nt in range(4):
            for t in range(2):
                b = 16 + 16 * 0 + 4 * nt + 2 * t
                p(f"ds_read_b64_tr_b16 v[{b}:{b+1}], v3 offset:{u*4096+nt*32+t*toff}", 'tr')
        if scale:
            p(f"s_lshl_b32 s24, s{30+2*u}, 7")
            p(f"s_add_u32 s24, s24, {WS['MOD'] + 4*640*4}")
            p(f"buffer_load_dwordx4 v[40:43], v7, s[{sWS}:{sWS+3}], s24 offen", 'cb')
            p(f"buffer_load_dwordx4 v[44:47], v7, s[{sWS}:{sWS+3}], s24 offen offset:64", 'cb')
            p.wait_vm('cb')
            for i in range(8):
                p(f"v_add_f32 v{40+i}, 1.0, v{40+i}")
            for i in range(8):
                p(f"v_cvt_pk_bf16_f32 v{40+i}, v{40+i}, v{40+i}")
            for i in range(8):
                p(f"v_and_b32 v{40+i}, 0xffff0000, v{40+i}")
        p.wait_lg('tr')
        if scale:
            for nt in range(4):
                for w_ in range(4):
                    r = 16 + 4 * nt + w_
                    p(f"v_lshlrev_b32 v50, 16, v{r}")
                    p(f"v_and_b32 v51, 0xffff0000, v{r}")
                    p(f"v_mul_f32 v50, v50, v{40+2*w_}")
                    p(f"v_mul_f32 v51, v51, v{41+2*w_}")
                    p(f"v_cvt_pk_bf16_f32 v{r}, v50, v51")
        for nt in range(4):
            p(f"s_lshl_b32 s24, s{31+2*u}, 2")
            p(f"s_add_u32 s24, s24, {nt}")
            if width == 5:
                p(f"s_mul_hi_u32 s25, s24, {(2**32 + 4)//5}")
                p(f"s_mul_i32 s26, s25, 5")
                p(f"s_sub_u32 s26, s24, s26")
                p(f"s_mul_i32 s25, s25, {S}")
                p(f"s_add_u32 s25, s25, s{30+2*u}")
                p(f"s_mul_i32 s25, s25, 5")
                p(f"s_add_u32 s25, s25, s26")
                p(f"s_lshl_b32 s25, s25, 10")
                p(f"s_add_u32 s25, s25, {dst_off}")
                p(f"buffer_store_dwordx4 v[{16+4*nt}:{19+4*nt}], v6, s[{sWS}:{sWS+3}], s25 offen")
            else:
                p(f"s_mul_hi_u32 s25, s24, {(2**32 + 6)//7}")
                p(f"s_mul_i32 s26, s25, 7")
                p(f"s_sub_u32 s26, s24, s26")
                p(f"s_mul_i32 s27, s25, {S}")
                p(f"s_add_u32 s27, s27, s{30+2*u}")
                p(f"s_mul_i32 s27, s27, 7")
                p(f"s_add_u32 s27, s27, s26")
                p(f"s_lshl_b32 s27, s27, 10")
                p(f"s_add_u32 s27, s27, {dst_off}")
                p(f"s_cmp_lt_u32 s24, 105")
                p(f"s_cselect_b32 s27, s27, 0x7ff00000")
                p(f"buffer_store_dwordx4 v[{16+4*nt}:{19+4*nt}], v6, s[{sWS}:{sWS+3}], s27 offen")
                p(f"s_sub_u32 s26, s24, 101")
                p(f"s_add_u32 s27, s{30+2*u}, {15*S}")
                p(f"s_mul_i32 s27, s27, 7")
                p(f"s_add_u32 s27, s27, s26")
                p(f"s_lshl_b32 s27, s27, 10")
                p(f"s_add_u32 s27, s27, {dst_off}")
                p(f"s_cmp_ge_u32 s24, 101")
                p(f"s_cselect_b32 s27, s27, 0x7ff00000")
                p(f"buffer_store_dwordx4 v[{16+4*nt}:{19+4*nt}], v6, s[{sWS}:{sWS+3}], s27 offen")
        p("s_nop 1")
    p("s_endpgm")

def magic(d): return (2**32 + d - 1) // d

def code_prefetch(p, nbytes, start_label):
    lab = p.newlabel("pc")
    p("s_getpc_b64 s[4:5]")
    p.label(lab)
    p(f"s_add_u32 s4, s4, {start_label}-{lab}")
    p(f"s_addc_u32 s5, s5, 0")
    p("v_lshlrev_b32 v1, 4, v0")
    for i in range((nbytes + 4095) // 4096):
        p(f"global_load_dwordx4 v[4:7], v1, s[4:5]", 'nochk')
        p("v_add_u32 v1, 0x1000, v1")
    p("s_waitcnt vmcnt(0)")
    p("s_endpgm")

def gen_k0(code_bytes, first_label):
    p = Prog("k0_kernel")
    L = lambda n: f"k0_{n}"
    p("s_cmp_ge_u32 s2, 256")
    p(f"s_cbranch_scc1 {L('end')}")
    p("s_cmp_ge_u32 s2, 248")
    p(f"s_cbranch_scc1 {L('pref')}")
    load_ptr(p, 4, 'ws')
    wave_id(p, 17, 2)
    p("s_cmp_ge_u32 s2, 87")
    p(f"s_cbranch_scc1 {L('tile')}")
    p("s_cmp_ge_u32 s2, 60")
    p(f"s_cbranch_scc1 {L('cs3')}")
    load_ptr(p, 6, 'wmod'); load_ptr(p, 8, 'c')
    p("s_waitcnt lgkmcnt(0)")
    srd(p, 12, 4, WS['END']); srd(p, 40, 6, 640*3840*2); srd(p, 44, 8, 1280)
    gemv_setup(p, 40, 7680, 2)
    p("v_lshlrev_b32 v6, 1, v5")
    for i in range(20):
        p(f"buffer_load_ushort v{120+i}, v6, s[44:47], 0 offen offset:{16*i}", 'c')
    gemv_issue(p, 40, 7680, 16)
    p.wait_vm('c')
    for i in range(20): p(f"v_lshlrev_b32 v{120+i}, 16, v{120+i}")
    for i in range(20): p(f"v_mul_f32 v{140+i}, {fhex(-LOG2E)}, v{120+i}")
    for i in range(20): p(f"v_exp_f32 v{140+i}, v{140+i}")
    for i in range(20): p(f"v_add_f32 v{140+i}, 1.0, v{140+i}")
    for i in range(20): p(f"v_rcp_f32 v{140+i}, v{140+i}")
    for i in range(20): p(f"v_mul_f32 v{120+i}, v{120+i}, v{140+i}")
    for i in range(20): p(f"v_cvt_pk_bf16_f32 v{120+i}, v{120+i}, v{120+i}")
    for i in range(20): p(f"v_and_b32 v{120+i}, 0xffff0000, v{120+i}")
    for j in range(8): p(f"v_mov_b32 v{100+j}, 0")
    for i in range(20):
        p(f"s_waitcnt vmcnt({19-i})")
        for w_ in range(4):
            r = 16 + 4 * i + w_
            p(f"v_lshlrev_b32 v110, 16, v{r}")
            p(f"v_and_b32 v111, 0xffff0000, v{r}")
            p(f"v_fmac_f32 v{100+2*w_}, v110, v{120+i}")
            p(f"v_fmac_f32 v{101+2*w_}, v111, v{120+i}")
    p("s_lshl_b32 s26, s2, 8")
    gemv_reduce_store(p, [list(range(100, 108))], 1, 12, [26], True)
    p.label(L('cs3'))
    load_ptr(p, 6, 'w3')
    p("s_sub_u32 s3, s2, 60")
    p("s_waitcnt lgkmcnt(0)")
    srd(p, 12, 4, WS['END']); srd(p, 40, 6, 640*1728*2)
    gemv_setup(p, 40, 3456, 3)
    gemv_issue(p, 40, 3456, 16)
    for j in range(8): p(f"v_mov_b32 v{100+j}, 0")
    for i in range(20):
        p(f"s_waitcnt vmcnt({19-i})")
        for w_ in range(4):
            r = 16 + 4 * i + w_
            p(f"v_lshlrev_b32 v110, 16, v{r}")
            p(f"v_and_b32 v111, 0xffff0000, v{r}")
            p(f"v_add_f32 v{100+2*w_}, v{100+2*w_}, v110")
            p(f"v_add_f32 v{101+2*w_}, v{101+2*w_}, v111")
    p("s_lshl_b32 s26, s3, 8")
    p(f"s_add_u32 s26, s26, {WS['CS3']}")
    gemv_reduce_store(p, [list(range(100, 108))], 1, 12, [26], False)
    p.label(L('tile'))
    load_ptr(p, 6, 'wo'); load_ptr(p, 8, 'w2'); load_ptr(p, 10, 'w3'); load_ptr(p, 18, 'w4')
    p("s_cmp_ge_u32 s2, 247")
    p(f"s_cbranch_scc1 {L('end')}")
    p("s_sub_u32 s3, s2, 87")
    p("s_lshl_b32 s3, s3, 2")
    p("s_add_u32 s3, s3, s17")
    p("s_lshl_b32 s3, s3, 2")
    p("s_waitcnt lgkmcnt(0)")
    srd(p, 12, 4, WS['END'])
    p("s_cmp_ge_u32 s3, 2020")
    p(f"s_cbranch_scc1 {L('t4')}")
    p("s_cmp_ge_u32 s3, 1480")
    p(f"s_cbranch_scc1 {L('t3')}")
    p("s_cmp_ge_u32 s3, 1280")
    p(f"s_cbranch_scc1 {L('t2')}")
    srd(p, 40, 6, 4096*640*2)
    pretile_wave(p, 40, 1280, 10, magic(10), 128, 5, WS['FWO'], True, 12, 3)
    p.label(L('t2'))
    p("s_sub_u32 s3, s3, 1280")
    srd(p, 40, 8, 640*640*2)
    pretile_wave(p, 40, 1280, 10, magic(10), 20, 5, WS['FW2'], False, 12, 3)
    p.label(L('t3'))
    p("s_sub_u32 s3, s3, 1480")
    srd(p, 40, 10, 640*1728*2)
    pretile_wave(p, 40, 3456, 27, magic(27), 20, 7, WS['FW3'], False, 12, 3)
    p.label(L('t4'))
    p("s_sub_u32 s3, s3, 2020")
    srd(p, 40, 18, 1728*640*2)
    pretile_wave(p, 40, 1280, 10, magic(10), 54, 5, WS['FW4'], False, 12, 3)
    p.label(L('pref'))
    code_prefetch(p, code_bytes, first_label)
    p.label(L('end'))
    p("s_endpgm")
    return p

def gen_k1():
    p = Prog("k1_kernel")
    L = lambda n: f"k1_{n}"
    p("s_cmp_ge_u32 s2, 152")
    p(f"s_cbranch_scc1 {L('end')}")
    load_ptr(p, 4, 'ws')
    wave_id(p, 17, 2)
    p("s_cmp_ge_u32 s2, 151")
    p(f"s_cbranch_scc1 {L('scal')}")
    p("s_cmp_ge_u32 s2, 141")
    p(f"s_cbranch_scc1 {L('gemv')}")
    p("s_cmp_ge_u32 s2, 128")
    p(f"s_cbranch_scc1 {L('tile')}")
    load_ptr(p, 6, 'x')
    p("s_waitcnt lgkmcnt(0)")
    srd(p, 12, 4, WS['END']); srd(p, 40, 6, 2048*640*2)
    p("v_and_b32 v2, 63, v0")
    p("v_lshrrev_b32 v3, 4, v2")
    p("s_lshl_b32 s20, s2, 4")
    p("s_lshl_b32 s21, s17, 2")
    p("s_add_u32 s20, s20, s21")
    p("v_add_u32 v3, s20, v3")
    p("v_and_b32 v4, 15, v2")
    p("v_mul_u32_u24 v5, 1280, v3")
    p("v_lshlrev_b32 v6, 4, v4")
    p("v_add_u32 v5, v5, v6")
    for i in range(5):
        p(f"buffer_load_dwordx4 v[{16+4*i}:{19+4*i}], v5, s[40:43], 0 offen offset:{256*i}", 'x')
    p("v_lshlrev_b32 v7, 5, v4")
    for i in range(5):
        for hh in range(2):
            p(f"buffer_load_dwordx4 v[{40+8*i+4*hh}:{43+8*i+4*hh}], v7, s[12:15], 0 offen offset:{512*i+16*hh}", 'sa')
    p(f"v_add_u32 v8, 2560, v7")
    for i in range(5):
        for hh in range(2):
            p(f"buffer_load_dwordx4 v[{80+8*i+4*hh}:{83+8*i+4*hh}], v8, s[12:15], 0 offen offset:{512*i+16*hh}", 'ca')
    p.wait_vm('x')
    for i in range(20):
        p(f"v_lshlrev_b32 v{120+2*i}, 16, v{16+i}")
        p(f"v_and_b32 v{121+2*i}, 0xffff0000, v{16+i}")
    p("v_mov_b32 v10, 0"); p("v_mov_b32 v11, 0")
    for i in range(40):
        p(f"v_add_f32 v10, v10, v{120+i}")
        p(f"v_fmac_f32 v11, v{120+i}, v{120+i}")
    row16_sum(p, [10, 11])
    p(f"v_mul_f32 v10, {fhex(1/640)}, v10")
    p(f"v_mul_f32 v11, {fhex(1/640)}, v11")
    p(f"v_fma_f32 v11, -v10, v10, v11")
    p(f"v_add_f32 v11, {fhex(1e-5)}, v11")
    p(f"v_rsq_f32 v11, v11")
    p("s_nop 0")
    p(f"v_mul_f32 v11, {fhex(QSCALE)}, v11")
    p(f"v_mul_f32 v10, v10, v11")
    p(f"v_sub_f32 v10, 0, v10")
    p.wait_vm('ca')
    for i in range(40):
        p(f"v_add_f32 v{80+i}, 1.0, v{80+i}")
    for i in range(20):
        p(f"v_cvt_pk_bf16_f32 v{160+i}, v{80+2*i}, v{81+2*i}")
    for i in range(20):
        p(f"v_lshlrev_b32 v{80+2*i}, 16, v{160+i}")
        p(f"v_and_b32 v{81+2*i}, 0xffff0000, v{160+i}")
    for i in range(40):
        p(f"v_fma_f32 v{120+i}, v{120+i}, v11, v10")
    for i in range(40):
        p(f"v_mul_f32 v{40+i}, {fhex(QSCALE)}, v{40+i}")
    for i in range(40):
        p(f"v_fma_f32 v{120+i}, v{120+i}, v{80+i}, v{40+i}")
    for i in range(20):
        p(f"v_cvt_pk_bf16_f32 v{16+i}, v{120+2*i}, v{121+2*i}")
    p("v_lshrrev_b32 v5, 5, v3")
    p("v_mul_u32_u24 v5, 40960, v5")
    p("v_lshrrev_b32 v6, 1, v4")
    p("v_lshlrev_b32 v6, 10, v6")
    p("v_add_u32 v5, v5, v6")
    p("v_and_b32 v6, 1, v4")
    p("v_lshlrev_b32 v6, 9, v6")
    p("v_add_u32 v5, v5, v6")
    p("v_and_b32 v6, 31, v3")
    p("v_lshlrev_b32 v6, 4, v6")
    p("v_add_u32 v5, v5, v6")
    for i in range(5):
        p(f"s_mov_b32 s20, {WS['H'] + 8192*i}")
        p(f"buffer_store_dwordx4 v[{16+4*i}:{19+4*i}], v5, s[12:15], s20 offen")
    p("s_endpgm")
    p.label(L('tile'))
    load_ptr(p, 6, 'w1')
    p("s_sub_u32 s3, s2, 128")
    p("s_lshl_b32 s3, s3, 2")
    p("s_add_u32 s3, s3, s17")
    p("s_cmp_ge_u32 s3, 50")
    p(f"s_cbranch_scc1 {L('end')}")
    p("s_lshl_b32 s3, s3, 2")
    p("s_waitcnt lgkmcnt(0)")
    srd(p, 12, 4, WS['END']); srd(p, 40, 6, 640*640*2)
    pretile_wave(p, 40, 1280, 10, magic(10), 20, 5, WS['FW1'], False, 12, 3, scale=True)
    p.label(L('gemv'))
    load_ptr(p, 6, 'w1')
    p("s_sub_u32 s3, s2, 141")
    p("s_waitcnt lgkmcnt(0)")
    srd(p, 12, 4, WS['END']); srd(p, 40, 6, 640*640*2)
    gemv_setup(p, 40, 1280, 3)
    p("v_lshlrev_b32 v6, 2, v5")
    p(f"s_mov_b32 s27, {WS['MOD'] + 3*640*4}")
    p(f"s_mov_b32 s28, {WS['MOD'] + 4*640*4}")
    for i in range(20):
        p(f"buffer_load_dword v{120+i}, v6, s[12:15], s27 offen offset:{32*i}", 'sb')
        p(f"buffer_load_dword v{140+i}, v6, s[12:15], s28 offen offset:{32*i}", 'sb')
    gemv_issue(p, 40, 1280, 16)
    for j in range(24): p(f"v_mov_b32 v{160+j}, 0")
    p.wait_vm('sb')
    for i in range(20): p(f"v_add_f32 v{140+i}, 1.0, v{140+i}")
    for i in range(20): p(f"v_cvt_pk_bf16_f32 v{140+i}, v{140+i}, v{140+i}")
    for i in range(20): p(f"v_and_b32 v{140+i}, 0xffff0000, v{140+i}")
    for i in range(20):
        p(f"s_waitcnt vmcnt({19-i})")
        for w_ in range(4):
            r = 16 + 4 * i + w_
            p(f"v_lshlrev_b32 v110, 16, v{r}")
            p(f"v_and_b32 v111, 0xffff0000, v{r}")
            p(f"v_add_f32 v{176+2*w_}, v{176+2*w_}, v110")
            p(f"v_add_f32 v{177+2*w_}, v{177+2*w_}, v111")
            p(f"v_fmac_f32 v{168+2*w_}, v110, v{120+i}")
            p(f"v_fmac_f32 v{169+2*w_}, v111, v{120+i}")
            p(f"v_mul_f32 v110, v110, v{140+i}")
            p(f"v_mul_f32 v111, v111, v{140+i}")
            p(f"v_cvt_pk_bf16_f32 v112, v110, v111")
            p(f"v_lshlrev_b32 v110, 16, v112")
            p(f"v_and_b32 v111, 0xffff0000, v112")
            p(f"v_add_f32 v{160+2*w_}, v{160+2*w_}, v110")
            p(f"v_add_f32 v{161+2*w_}, v{161+2*w_}, v111")
    p("s_lshl_b32 s26, s3, 8")
    p(f"s_add_u32 s27, s26, {WS['T1']}")
    p(f"s_add_u32 s28, s26, {WS['CS1']}")
    p(f"s_add_u32 s26, s26, {WS['U1']}")
    gemv_reduce_store(p, [list(range(160, 168)), list(range(168, 176)), list(range(176, 184))], 3, 12, [26, 27, 28], False)
    p.label(L('scal'))
    p("s_cmp_ge_u32 s17, 1")
    p(f"s_cbranch_scc1 {L('end')}")
    p("s_waitcnt lgkmcnt(0)")
    srd(p, 12, 4, WS['END'])
    p("v_lshlrev_b32 v6, 2, v0")
    p(f"s_mov_b32 s27, {WS['MOD'] + 3*640*4}")
    p(f"s_mov_b32 s28, {WS['MOD'] + 4*640*4}")
    for i in range(10):
        p(f"buffer_load_dword v{16+i}, v6, s[12:15], s27 offen offset:{256*i}", 'sb')
        p(f"buffer_load_dword v{32+i}, v6, s[12:15], s28 offen offset:{256*i}", 'sb')
    for j in range(5): p(f"v_mov_b32 v{48+j}, 0")
    p.wait_vm('sb')
    for i in range(10): p(f"v_add_f32 v{32+i}, 1.0, v{32+i}")
    for i in range(10): p(f"v_cvt_pk_bf16_f32 v{32+i}, v{32+i}, v{32+i}")
    for i in range(10): p(f"v_and_b32 v{32+i}, 0xffff0000, v{32+i}")
    for i in range(10):
        p(f"v_add_f32 v48, v48, v{32+i}")
        p(f"v_fmac_f32 v49, v{32+i}, v{32+i}")
        p(f"v_fmac_f32 v50, v{32+i}, v{16+i}")
        p(f"v_add_f32 v51, v51, v{16+i}")
        p(f"v_fmac_f32 v52, v{16+i}, v{16+i}")
    row16_sum(p, [48, 49, 50, 51, 52])
    xlane_sum_16_32(p, [48, 49, 50, 51, 52], 60)
    p("v_cmp_eq_u32 vcc, 0, v0")
    p("s_and_saveexec_b64 s[24:25], vcc")
    p("v_mov_b32 v6, 0")
    p(f"s_mov_b32 s27, {WS['SCAL']}")
    p("buffer_store_dwordx4 v[48:51], v6, s[12:15], s27 offen")
    p("buffer_store_dword v52, v6, s[12:15], s27 offen offset:16")
    p.label(L('end'))
    p("s_endpgm")
    return p
```

```python
from common import *

vH = [1, 2]; vWQ = [3, 4, 5, 6]; vKD = [7, 8, 9, 10]; vVD = 11
vKA = list(range(12, 20)); vTA = [20, 21, 22, 23]; vL = [24, 25, 26, 27]; vOS = 28
T = list(range(30, 48))
QB = 48; SB = 112; PB = 176; MB = 208
def Qr(s, qb): return QB + (s * 2 + qb) * 4
def Sr(buf, qb): return SB + buf * 32 + qb * 16
def Pr(buf, qb, slab): return PB + buf * 16 + qb * 8 + slab * 4
def Mr(qb): return MB + qb * 16
def ACC(dblk, qb): return SB + (dblk * 2 + qb) * 16
def Hr(ks, qb): return QB + ((ks & 7) * 2 + qb) * 4
def Or(dblk, qb): return (dblk * 2 + qb) * 16
def KF(setn, s): return (128 if setn == 0 else 192) + 4 * s
def VF(slab, dblk): return 160 + 4 * (slab * 4 + dblk)
def WF(ks, dblk): return 128 + (ks & 3) * 16 + 4 * dblk
sWQ, sK, sV, sH, sO = 12, 16, 20, 24, 28
sW, sHEAD, sRT = 32, 33, 34
sHoff, sWQoff, sKVoff, sLD, sTMP, sOoff = 35, 36, 37, 38, 39, 40
LK, LV, LW = 0, 65536, 98304
MF32 = "v_mfma_f32_32x32x16_bf16"

def slot(p, mfma, pre=(), post=()):
    p(mfma[0], mfma[1] if len(mfma) > 1 else None)
    for x in pre:
        if x is None: continue
        if callable(x): x()
        else: p(x[0], x[1] if len(x) > 1 else None)
    for x in post:
        if x is None: continue
        if callable(x): x()
        else: p(x[0], x[1] if len(x) > 1 else None)

def gen_ka(dbg=False):
    p = Prog("ka_kernel")
    L = lambda n: f"ka_{n}"
    p("s_cmp_ge_u32 s2, 256")
    p(f"s_cbranch_scc1 {L('end')}")
    load_ptr(p, 4, 'wq'); load_ptr(p, 6, 'k'); load_ptr(p, 8, 'v'); load_ptr(p, 10, 'ws')
    wave_id(p, sW, 30)
    p("s_and_b32 s41, s2, 7")
    p("s_lshr_b32 s42, s2, 3")
    p("s_and_b32 s43, s41, 1")
    p("s_lshl_b32 s43, s43, 2")
    p("s_and_b32 s44, s42, 3")
    p(f"s_add_u32 s{sRT}, s43, s44")
    p("s_lshr_b32 s43, s41, 1")
    p("s_lshl_b32 s43, s43, 3")
    p("s_lshr_b32 s44, s42, 2")
    p(f"s_add_u32 s{sHEAD}, s43, s44")
    p("v_and_b32 v30, 63, v0")
    p("v_lshlrev_b32 v31, 4, v30")
    p(f"v_mov_b32 v{vH[0]}, v31")
    p(f"v_add_u32 v{vH[1]}, 40960, v31")
    p("v_lshrrev_b32 v32, 4, v30")
    p("v_and_b32 v33, 15, v30")
    p("v_lshlrev_b32 v34, 2, v32")
    p("v_xor_b32 v34, v33, v34")
    p("v_lshlrev_b32 v34, 4, v34")
    p("v_lshlrev_b32 v35, 13, v32")
    p(f"v_add_u32 v{vWQ[0]}, v35, v34")
    for i in range(1, 4):
        p(f"v_add_u32 v{vWQ[i]}, {i*(4*8192-1024)}, v{vWQ[0]}")
    p("v_lshlrev_b32 v35, 8, v32")
    p(f"v_add_u32 v{vVD}, v35, v34")
    for i in range(4):
        p(f"v_add_u32 v36, {4*i}, v32")
        p(f"v_xor_b32 v36, v33, v36")
        p(f"v_lshlrev_b32 v36, 4, v36")
        p(f"v_add_u32 v{vKD[i]}, v35, v36")
    p("s_waitcnt lgkmcnt(0)")
    p(f"s_lshl_b32 s41, s{sHEAD}, 8")
    p(f"s_add_u32 s{sWQ}, s4, s41"); p(f"s_addc_u32 s{sWQ+1}, s5, 0")
    p(f"s_sub_u32 s{sWQ+2}, {640*4096*2}, s41"); p(f"s_mov_b32 s{sWQ+3}, 0x20000")
    p(f"s_lshl_b32 s41, s{sHEAD}, 19")
    p(f"s_add_u32 s41, s41, {1536*256}")
    p(f"s_add_u32 s{sK}, s6, s41"); p(f"s_addc_u32 s{sK+1}, s7, 0")
    p(f"s_mov_b32 s{sK+2}, 131072"); p(f"s_mov_b32 s{sK+3}, 0x20000")
    p(f"s_add_u32 s{sV}, s8, s41"); p(f"s_addc_u32 s{sV+1}, s9, 0")
    p(f"s_mov_b32 s{sV+2}, 131072"); p(f"s_mov_b32 s{sV+3}, 0x20000")
    srd(p, sH, 10, SZ['H'], WS['H'])
    srd(p, sO, 10, SZ['O'], WS['O'])
    p(f"s_lshl_b32 s41, s{sRT}, 3")
    p(f"s_lshl_b32 s42, s{sW}, 1")
    p(f"s_add_u32 s41, s41, s42")
    p(f"s_mul_i32 s{sHoff}, s41, 40960")
    p(f"s_lshl_b32 s{sLD}, s{sW}, 12")
    p(f"s_lshl_b32 s{sWQoff}, s{sW}, 17")

    def dma_wq(c):
        out = []
        out.append(lambda: p(f"s_add_u32 m0, s{sLD}, {LW + (c & 3) * 16384}"))
        out.append(lambda: p(f"s_add_u32 s{sTMP}, s{sWQoff}, {c * 64 * 8192}"))
        for i in range(4):
            out.append(lambda i=i: p(f"buffer_load_dwordx4 v{vWQ[i]}, s[{sWQ}:{sWQ+3}], s{sTMP} offen offset:{i*1024} lds", f"wq{c}"))
        return out
    def dma_k(t):
        out = []
        out.append(lambda: p(f"s_add_u32 m0, s{sLD}, {LK + (t & 3) * 16384}"))
        out.append(lambda: p(f"s_add_u32 s{sKVoff}, s{sLD}, {t * 16384}"))
        for i in range(4):
            out.append(lambda i=i: p(f"buffer_load_dwordx4 v{vKD[i]}, s[{sK}:{sK+3}], s{sKVoff} offen offset:{i*1024} lds", f"k{t}"))
        return out
    def dma_v(t):
        out = []
        out.append(lambda: p(f"s_add_u32 m0, s{sLD}, {LV + (t & 3) * 16384}"))
        out.append(lambda: p(f"s_add_u32 s{sKVoff}, s{sLD}, {t * 16384}"))
        for i in range(4):
            out.append(lambda i=i: p(f"buffer_load_dwordx4 v{vVD}, s[{sV}:{sV+3}], s{sKVoff} offen offset:{i*1024} lds", f"v{t}"))
        return out
    def h_load(ks, qb):
        return lambda: p(f"buffer_load_dwordx4 v[{Hr(ks,qb)}:{Hr(ks,qb)+3}], v{vH[qb]}, s[{sH}:{sH+3}], s{46 + ((ks >> 2) & 1)} offen offset:{(ks & 3)*1024}", f"h{ks}")
    def h_off(chunk):
        return lambda: p(f"s_add_u32 s{46 + (chunk & 1)}, s{sHoff}, {chunk * 4096}")

    for f in dma_wq(0): f()
    h_off(0)(); h_off(1)()
    for ks in range(0, 2):
        for qb in range(2): h_load(ks, qb)()
    for f in dma_wq(1): f()
    for ks in range(2, 8):
        for qb in range(2): h_load(ks, qb)()
    for f in dma_wq(2): f()
    for f in dma_wq(3): f()
    p("v_lshrrev_b32 v35, 5, v30")
    p("v_and_b32 v36, 31, v30")
    p("v_and_b32 v37, 15, v30")
    p("v_xor_b32 v37, v37, v35")
    p("v_lshlrev_b32 v38, 8, v36")
    for s in range(8):
        p(f"v_xor_b32 v39, {2*s}, v37")
        p(f"v_lshlrev_b32 v39, 4, v39")
        p(f"v_add_u32 v{vKA[s]}, v38, v39")
    p("v_bfe_u32 v36, v30, 2, 2")
    p("v_and_b32 v37, 1, v30")
    p("v_lshlrev_b32 v37, 1, v37")
    p("v_bfe_u32 v38, v30, 1, 1")
    p("v_or_b32 v37, v37, v38")
    p("v_lshlrev_b32 v37, 3, v37")
    p("v_bfe_u32 v38, v30, 4, 1")
    p("v_lshlrev_b32 v38, 5, v38")
    p("v_add_u32 v37, v37, v38")
    p("v_lshlrev_b32 v38, 3, v35")
    p("v_add_u32 v38, v38, v36")
    p("v_lshlrev_b32 v38, 8, v38")
    p("v_add_u32 v37, v37, v38")
    p(f"v_add_u32 v37, {LW}, v37")
    for d in range(4):
        p(f"v_xor_b32 v38, {d}, v36")
        p(f"v_lshlrev_b32 v38, 6, v38")
        p(f"v_add_u32 v{vTA[d]}, v37, v38")
    p("v_bfe_u32 v36, v30, 4, 1")
    p("v_lshlrev_b32 v36, 17, v36")
    p("v_and_b32 v37, 15, v30")
    p("v_lshlrev_b32 v38, 4, v35")
    p("v_add_u32 v37, v37, v38")
    p("v_lshlrev_b32 v37, 4, v37")
    p(f"v_add_u32 v{vOS}, v36, v37")
    p("v_mov_b32 v40, v35")
    for r in range(SB, SB + 128): p(f"v_mov_b32 v{r}, 0")
    for r in range(128): p(f"v_accvgpr_write_b32 a{r}, 0")
    for r in vL: p(f"v_mov_b32 v{r}, 0")

    def w_read(ks, dblk, t):
        c = ks >> 2; s = ks & 3
        off = (c & 3) * 16384 + s * 4096 + t * 1024
        a = WF(ks, dblk) + 2 * t
        return (f"ds_read_b64_tr_b16 a[{a}:{a+1}], v{vTA[dblk]} offset:{off}", f"wf{ks}_{dblk}")
    def k_read(b, s):
        off = ((b >> 1) & 3) * 16384 + (b & 1) * 8192
        a = KF(b & 1, s)
        return (f"ds_read_b128 a[{a}:{a+3}], v{vKA[s]} offset:{off}", f"kf{b}_{s}")
    def v_read(b, slab, dblk, t):
        off = ((b >> 1) & 3) * 16384 + (b & 1) * 8192 + slab * 4096 + t * 2048
        a = VF(slab, dblk) + 2 * t
        return (f"ds_read_b64_tr_b16 a[{a}:{a+1}], v{vTA[dblk]} offset:{off}", f"vf{b}_{slab}_{dblk}")

    p.wait_vm("wq0")
    p("s_barrier")
    for d in range(4):
        for t in range(2):
            x = w_read(0, d, t); p(x[0], x[1])
    extra_dma = {5: dma_k(0), 6: dma_k(1), 7: dma_v(0), 8: dma_v(1)}
    for ks in range(40):
        c, s = ks >> 2, ks & 3
        pend = []
        if s == 3:
            if c < 9: p.wait_vm(f"wq{c+1}")
            else: p.wait_vm("k0", "k1", "v0")
            p("s_barrier")
            if 1 <= c - 0 and c + 3 <= 9 and c >= 1: pend += dma_wq(c + 3)
        if s == 0 and c in extra_dma: pend += extra_dma[c]
        if ks >= 1 and ks + 7 < 40:
            if ((ks + 7) & 3) == 0: pend.append(h_off((ks + 7) >> 2))
            pend += [h_load(ks + 7, 0), h_load(ks + 7, 1)]
        p.wait_vm(f"h{ks}")
        for j in range(8):
            d, qb = j >> 1, j & 1
            if qb == 0 and d in (0, 2): p.wait_lg(f"wf{ks}_{d+1}")
            m = f"{MF32} v[{ACC(d,qb)}:{ACC(d,qb)+15}], a[{WF(ks,d)}:{WF(ks,d)+3}], v[{Hr(ks,qb)}:{Hr(ks,qb)+3}], v[{ACC(d,qb)}:{ACC(d,qb)+15}]"
            pre = []
            if ks + 1 < 40: pre.append(w_read(ks + 1, j >> 1, j & 1))
            else: pre.append(k_read(0, j))
            n = (len(pend) + (7 - j)) // (8 - j)
            pre += pend[:n]; pend = pend[n:]
            slot(p, (m,), pre)
        assert not pend
    for s in range(8): x = k_read(1, s); p(x[0], x[1])
    after_b10 = dma_k(2) + dma_k(3) + dma_v(2)
    for f in after_b10: f()
    for d in range(4):
        for qb in range(2):
            for rr in range(2):
                for w_ in range(4):
                    a = ACC(d, qb) + 8 * rr + 2 * w_
                    p(f"v_cvt_pk_bf16_f32 v{Qr(2*d+rr, qb)+w_}, v{a}, v{a+1}")
    p(f"v_lshlrev_b32 v41, 10, v40")
    p(f"v_add_u32 v41, {LW - LV}, v41")
    for d in range(4): p(f"v_sub_u32 v{vTA[d]}, v{vTA[d]}, v41")
    for s in range(8):
        if s in (0, 4): p.wait_lg(f"kf0_{s+3}")
        for qb in range(2):
            c_ = "0" if s == 0 else f"v[{Sr(0,qb)}:{Sr(0,qb)+15}]"
            p(f"{MF32} v[{Sr(0,qb)}:{Sr(0,qb)+15}], a[{KF(0,s)}:{KF(0,s)+3}], v[{Qr(s,qb)}:{Qr(s,qb)+3}], {c_}")
    p("s_nop 7"); p("s_nop 3")
    for qb in range(2):
        S = Sr(0, qb)
        p(f"v_max3_f32 v{30+qb}, v{S}, v{S+1}, v{S+2}")
    for i in range(6):
        for qb in range(2):
            S = Sr(0, qb)
            p(f"v_max3_f32 v{30+qb}, v{30+qb}, v{S+3+2*i}, v{S+4+2*i}")
    for qb in range(2): p(f"v_max_f32 v{30+qb}, v{30+qb}, v{Sr(0,qb)+15}")
    for qb in range(2): p(f"v_mov_b32 v{32+qb}, v{30+qb}")
    p("s_nop 1")
    for qb in range(2): p(f"v_permlane32_swap_b32 v{30+qb}, v{32+qb}")
    p("s_nop 0")
    for qb in range(2): p(f"v_max_f32 v{30+qb}, v{30+qb}, v{32+qb}")
    for qb in range(2): p(f"v_sub_f32 v{Mr(qb)}, 0, v{30+qb}")
    for r in range(1, 16):
        for qb in range(2): p(f"v_mov_b32 v{Mr(qb)+r}, v{Mr(qb)}")

    def E_ops(b, sub=False):
        buf = b & 1
        slots = [[] for _ in range(32)]
        for pr in range(16):
            qb = pr >> 3; r = 2 * (pr & 7); S = Sr(buf, qb) + r
            Pd = Pr(buf, qb, (pr & 7) >> 2) + (pr & 3)
            a, bb = [], []
            if sub:
                a += [(f"v_add_f32 v{S}, v{S}, v{Mr(qb)}",), (f"v_add_f32 v{S+1}, v{S+1}, v{Mr(qb)}",)]
            a += [(f"v_exp_f32 v{S}, v{S}",), (f"v_exp_f32 v{S+1}, v{S+1}",)]
            bb += [(f"v_add_f32 v{vL[2*qb]}, v{vL[2*qb]}, v{S}",), (f"v_add_f32 v{vL[2*qb+1]}, v{vL[2*qb+1]}, v{S+1}",),
                   (f"v_cvt_pk_bf16_f32 v{Pd}, v{S}, v{S+1}",)]
            slots[2 * pr] += a; slots[2 * pr + 1] += bb
        return slots
    def S_mfma(b, i):
        s, qb = i >> 1, i & 1; buf = b & 1
        c_ = f"v[{Mr(qb)}:{Mr(qb)+15}]" if s == 0 else f"v[{Sr(buf,qb)}:{Sr(buf,qb)+15}]"
        return f"{MF32} v[{Sr(buf,qb)}:{Sr(buf,qb)+15}], a[{KF(b&1,s)}:{KF(b&1,s)+3}], v[{Qr(s,qb)}:{Qr(s,qb)+3}], {c_}"
    def PV_mfma(b, j):
        slab, d, qb = j >> 3, (j >> 1) & 3, j & 1
        return f"{MF32} a[{Or(d,qb)}:{Or(d,qb)+15}], a[{VF(slab,d)}:{VF(slab,d)+3}], v[{Pr(b&1,qb,slab)}:{Pr(b&1,qb,slab)+3}], a[{Or(d,qb)}:{Or(d,qb)+15}]"

    for b in range(17):
        e = b >> 1
        dmas = []
        if (b & 1) == 0 and 1 <= e <= 7:
            p("s_waitcnt lgkmcnt(0)")
            tags = [f"v{e}"] + ([f"k{e+1}"] if e + 1 <= 7 else [])
            p.wait_vm(*tags)
            p("s_barrier")
            if e == 1: dmas = dma_v(3) + dma_k(4) + dma_k(5)
            elif e == 2: dmas = dma_v(4) + dma_k(6)
            elif e == 3: dmas = dma_v(5) + dma_k(7)
            elif e <= 5: dmas = dma_v(e + 2)
        hasS = b + 1 <= 15; hasPV = 1 <= b <= 16; hasE = b <= 15
        ev = E_ops(b, sub=(b == 0)) if hasE else [[] for _ in range(32)]
        mf = []
        if hasS: mf += [('S', i) for i in range(16)]
        if hasPV: mf += [('P', j) for j in range(16)]
        ds = []
        if hasPV: ds += [v_read(b - 1, f >> 2, f & 3, t) for f in range(8) for t in range(2)]
        kr = [k_read(b + 2, s) for s in range(8)] if b + 2 <= 15 else []
        nsl = len(mf)
        per = 32 // nsl
        if not hasS and hasPV:
            for x in ds[:8]: p(x[0], x[1])
            ds = ds[8:]
        dsq = ds + kr
        for i, (kind, idx) in enumerate(mf):
            if kind == 'S':
                if idx in (0, 8): p.wait_lg(f"kf{b+1}_{(idx >> 1) + 3}")
                m = S_mfma(b + 1, idx)
            else:
                if idx % 4 == 0:
                    f = idx >> 1
                    p.wait_lg(f"vf{b-1}_{(f+1) >> 2}_{(f+1) & 3}")
                m = PV_mfma(b - 1, idx)
            pre = []
            if dsq: pre.append(dsq.pop(0))
            if dmas and i >= 1:
                pre.append(dmas.pop(0))
            post = []
            for k_ in range(per): post += ev[i * per + k_]
            slot(p, (m,), pre, post)
        assert not dsq and not dmas, (b, dsq, dmas)
    for qb in range(2): p(f"v_add_f32 v{vL[2*qb]}, v{vL[2*qb]}, v{vL[2*qb+1]}")
    for qb in range(2): p(f"v_mov_b32 v{vL[2*qb+1]}, v{vL[2*qb]}")
    p("s_nop 1")
    for qb in range(2): p(f"v_permlane32_swap_b32 v{vL[2*qb]}, v{vL[2*qb+1]}")
    p("s_nop 0")
    for qb in range(2): p(f"v_add_f32 v{vL[2*qb]}, v{vL[2*qb]}, v{vL[2*qb+1]}")
    for qb in range(2): p(f"v_rcp_f32 v{vL[2*qb+1]}, v{vL[2*qb]}")
    p(f"s_lshl_b32 s41, s{sRT}, 4")
    p(f"s_lshl_b32 s42, s{sW}, 2")
    p(f"s_add_u32 s41, s41, s42")
    p(f"s_lshl_b32 s41, s41, 17")
    p(f"s_lshl_b32 s42, s{sHEAD}, 12")
    p(f"s_add_u32 s{sOoff}, s41, s42")
    p(f"s_add_u32 s{sOoff+1}, s{sOoff}, {2*131072}")
    p("s_nop 3")
    k_ = 0
    for d in range(4):
        for qb in range(2):
            tb = SB + (k_ % 4) * 16; k_ += 1
            for r in range(16): p(f"v_accvgpr_read_b32 v{tb+r}, a{Or(d,qb)+r}")
            for r in range(16): p(f"v_mul_f32 v{tb+r}, v{tb+r}, v{vL[2*qb+1]}")
            ob = PB + ((k_ - 1) % 4) * 8
            for w_ in range(8): p(f"v_cvt_pk_bf16_f32 v{ob+w_}, v{tb+2*w_}, v{tb+2*w_+1}")
            for rr in range(2):
                p(f"buffer_store_dwordx4 v[{ob+4*rr}:{ob+4*rr+3}], v{vOS}, s[{sO}:{sO+3}], s{sOoff+qb} offen offset:{d*1024+rr*512}")
    p.label(L('end'))
    p("s_endpgm")
    return p
```

```python
import sys
sys.path.insert(0, 'gen')
from common import *
import k0, ka, gemm

HEADER = open('adaLN_cond__sliding_block_cached__mixer_s_mlp__prompt.s.ref').read().split('; Override launch')[0]

def build(kernels, path, main_name="adaLN_cond__sliding_block_cached__mixer_s_mlp__prompt_kernel"):
    out = [HEADER.rstrip('\n')]
    for p, grid, block, lds in kernels:
        out.append(f"; @launch kernel={p.name} grid=({grid},1,1) block=({block},1,1) lds={lds}")
    out.append('.amdgcn_target "amdgcn-amd-amdhsa--gfx950"')
    out.append('.text')
    seen = set(); descs = []
    for p, grid, block, lds in kernels:
        if p.name in seen: continue
        seen.add(p.name)
        errs = p.check()
        if errs: print(f"!! {p.name}: {len(errs)} check errors")
        out.append(f".globl {p.name}\n.p2align 8\n.type {p.name},@function\n{p.name}:")
        out.append(p.text())
        vg, ag, sg = p.max_regs()
        descs.append(descriptor(p.name, vg, ag, sg))
        print(f"{p.name}: {p.ninstr()} instrs, vgpr={vg} agpr={ag} sgpr={sg}")
    out.append("code_end:")
    out.append('.section .rodata,"a"\n.p2align 6')
    for d in descs:
        out.append(d); out.append('.p2align 6')
    open(path, 'w').write('\n'.join(out) + '\n')

if __name__ == "__main__":
    ks = [(k0.gen_k0(32768, "k1_kernel"), 256, 256, 65536), (k0.gen_k1(), 152, 256, 65536), (ka.gen_ka(), 256, 256, 163840),
          (gemm.gen_splitk('p1'), 256, 256, 61440), (gemm.gen_splitk('p2'), 256, 256, 61440), (gemm.gen_splitk('p3'), 256, 256, 61440),
          (gemm.gen_p4(), 256, 256, 147456), (gemm.gen_splitk('p5'), 256, 256, 61440)]
    build(ks, sys.argv[1] if len(sys.argv) > 1 else 'out.s')
```

```python
import sys
from h import *

def gen(name, body_fn, nrep, vg=256, ag=256, lds=65536, block=256, grid=256):
    L = []
    L.append(f"; @launch grid=({grid},1,1) block=({block},1,1) lds={lds}")
    L.append('.amdgcn_target "amdgcn-amd-amdhsa--gfx950"')
    L.append(".text")
    L.append(head(name))
    L.append("s_load_dwordx2 s[4:5], s[0:1], 0")
    L.append("s_load_dwordx2 s[6:7], s[0:1], 8")
    L.append("s_waitcnt lgkmcnt(0)")
    L.append("s_mov_b32 s8, s6\ns_mov_b32 s9, s7\ns_mov_b32 s10, 0x4000000\ns_mov_b32 s11, 0x20000")
    L.append("s_mov_b32 s12, s4\ns_mov_b32 s13, s5\ns_mov_b32 s14, 0x100000\ns_mov_b32 s15, 0x20000")
    L.append("v_lshlrev_b32 v1, 4, v0")
    L.append("v_and_b32 v1, 0x3fff, v1")
    L.append("v_cvt_f32_u32 v2, v0")
    L.append("v_mul_f32 v2, 0x3a83126f, v2")
    for r in range(3, vg):
        L.append(f"v_mov_b32 v{r}, v2")
    for r in range(0, ag):
        L.append(f"v_accvgpr_write_b32 a{r}, v2")
    L.append("s_mov_b32 s16, 0")
    L.append("s_mov_b32 s20, 0")
    L.append("s_mov_b32 m0, 0")
    L.append("s_barrier")
    L.append("s_memtime s[18:19]")
    L.append("s_memrealtime s[22:23]")
    L.append("s_waitcnt lgkmcnt(0)")
    L.append(".p2align 6")
    L.append("LOOP:")
    L += body_fn()
    L.append("s_add_u32 s16, s16, 1")
    L.append(f"s_cmp_lt_u32 s16, {nrep}")
    L.append("s_cbranch_scc1 LOOP")
    L.append("s_waitcnt vmcnt(0) lgkmcnt(0)")
    L.append("s_memtime s[24:25]")
    L.append("s_memrealtime s[26:27]")
    L.append("s_waitcnt lgkmcnt(0)")
    L.append("s_sub_u32 s24, s24, s18")
    L.append("s_sub_u32 s26, s26, s22")
    L.append("v_lshrrev_b32 v3, 6, v0")
    L.append("v_lshlrev_b32 v3, 3, v3")
    L.append("s_lshl_b32 s3, s2, 7")
    L.append("v_add_u32 v3, s3, v3")
    L.append("v_mov_b32 v4, s24\nv_mov_b32 v5, s26")
    L.append("v_and_b32 v6, 63, v0\nv_cmp_eq_u32 vcc, 0, v6\ns_and_saveexec_b64 s[28:29], vcc")
    L.append("buffer_store_dwordx2 v[4:5], v3, s[12:15], 0 offen")
    L.append("s_waitcnt vmcnt(0)")
    L.append("s_endpgm")
    L.append(kd(name, vg, ag))
    return "\n".join(L)

def run(tag, body_fn, nmfma, nrep=200, block=256, vg=256, ag=256, **kw):
    name = "mb_kernel"
    asm = gen(name, body_fn, nrep, block=block, vg=vg, ag=ag, **kw)
    co = assemble(asm, name, 2)
    if not ON_GPU:
        print('assembled', tag); return
    k = AsmKernel(co, name)
    out = DeviceBuffer(1 << 20); inp = DeviceBuffer(1 << 26)
    memset(out, 0);
    ka = pack_ptr_kernargs([out.ptr, inp.ptr])
    lds = kw.get("lds", 65536)
    for it in range(3):
        k.launch((256,1,1), (block,1,1), ka, lds)
    sync()
    o = out.to_numpy(np.uint32, (256, 16, 2))
    nw = block // 64
    cyc = o[:, :nw, 0].astype(np.float64); rt = o[:, :nw, 1].astype(np.float64)
    per = np.median(cyc) / nrep
    print(f"{tag:50s} cyc/iter={per:9.1f}  cyc/mfma={per/max(nmfma,1):7.2f}  max={cyc.max()/nrep:9.1f} clk={np.median(cyc)/np.median(rt)*100:7.1f}MHz", flush=True)
    k.unload()

def mf(i, acc="v"):
    d = (i % 8) * 16
    return f"v_mfma_f32_32x32x16_bf16 a[{d}:{d+15}], v[4:7], v[8:11], a[{d}:{d+15}]"

def body(fill, n=32):
    def f():
        L = []
        for i in range(n):
            L.append(mf(i))
            L += fill(i)
        return L
    return f

if __name__ == "__main__":
    run("bare mfma", body(lambda i: []), 32)
    for k in (2, 4, 5, 6, 7):
        run(f"{k} v_add", body(lambda i, k=k: [f"v_add_f32 v{16+(i*7+j)%64}, v{100+j}, v{110+j}" for j in range(k)]), 32)
    run("1exp+1add+.5cvt", body(lambda i: [f"v_exp_f32 v{16+i}, v{16+i}", f"v_add_f32 v{100+(i&1)}, v{100+(i&1)}, v{16+(i+31)%32}"] + ([f"v_cvt_pk_bf16_f32 v{64+i//2}, v{16+(i+30)%32}, v{16+(i+31)%32}"] if i&1 else [])), 32)
    def full(i, nds=True, extra=0):
        L = [f"v_exp_f32 v{16+i}, v{16+i}"]
        if nds:
            if i < 16: L.append(f"ds_read_b64_tr_b16 a[{128+2*i}:{129+2*i}], v1 offset:{i*512}")
            elif i & 1: L.append(f"ds_read_b128 a[{160+2*(i-17)}:{163+2*(i-17)}], v1 offset:{i*256}")
        L.append(f"v_add_f32 v{100+(i&1)}, v{100+(i&1)}, v{16+(i+31)%32}")
        if i & 1: L.append(f"v_cvt_pk_bf16_f32 v{64+i//2}, v{16+(i+30)%32}, v{16+(i+31)%32}")
        for j in range(extra): L.append("s_nop 0")
        return L
    run("exp+add+.5cvt+ds", body(full), 32)
    run("exp+add+.5cvt+ds+1nop", body(lambda i: full(i, True, 1)), 32)
    run("exp+add+.5cvt+ds+.25 waitcnt", body(lambda i: full(i) + (["s_waitcnt lgkmcnt(4)"] if i % 4 == 0 else [])), 32)
    run("exp+add+.5cvt+ds+ salu1", body(lambda i: full(i) + (["s_add_u32 s20, s20, 4"])), 32)
    run("exp+add+.5cvt+ds+ salu2", body(lambda i: full(i) + (["s_add_u32 s20, s20, 4", "s_add_u32 s21, s21, 4"])), 32)
    def dma(i, every=8):
        if i % every == 0:
            return [f"s_mov_b32 m0, {32768 + (i//every)*1024}", "s_nop 0", f"buffer_load_dwordx4 v1, s[8:11], s20 offen lds"]
        return []
    def dma2(i, every=8):
        L = []
        if i % every == 0:
            L += [f"buffer_load_dwordx4 v1, s[8:11], s20 offen lds"]
        if i % every == 2:
            L += [f"s_add_u32 m0, m0, 0"]
        if i == 31: L += ["s_waitcnt vmcnt(8)"]
        return L
    run("bare + dma/8", body(lambda i: dma2(i, 8)), 32)
    run("bare + dma/4", body(lambda i: dma2(i, 4)), 32)
    run("bare + dma/3", body(lambda i: dma2(i, 3)), 32)
    run("full + dma/8", body(lambda i: full(i) + dma2(i, 8)), 32)
    run("full + dma/4", body(lambda i: full(i) + dma2(i, 4)), 32)
    run("2 pk_add + exp", body(lambda i: [f"v_exp_f32 v{16+i}, v{16+i}"] + ([f"v_pk_add_f32 v[100:101], v[100:101], v[{16+(i+29)%32}:{17+(i+29)%32}]"] if i&1 else [])), 32)
    run("exp + .5cvt +.5dot2", body(lambda i: [f"v_exp_f32 v{16+i}, v{16+i}"] + ([f"v_cvt_pk_bf16_f32 v{64+i//2}, v{16+(i+30)%32}, v{16+(i+31)%32}", f"v_dot2c_f32_bf16 v{100}, v{64+(i//2+15)%16}, v12"] if i&1 else [])), 32)
```

```python
from mb1 import *
def trv(i): return f"ds_read_b64_tr_b16 a[{128+2*(i%16)}:{129+2*(i%16)}], v12 offset:{(i%16)*512}"
def mk(fill, shift):
    def f():
        L = ["v_and_b32 v12, 63, v0", "v_lshlrev_b32 v12, 3, v12"]
        if shift: L.append("s_nop 0")
        for i in range(32):
            L.append(mf(i)); L += fill(i)
        if shift: L.append("s_nop 0")
        return L
    return f
fa = lambda i: [trv(i), f"v_exp_f32 v{16+i}, v{16+i}", f"v_exp_f32 v{48+i}, v{48+i}"] if i % 2 == 0 else [trv(i), "v_add_f32 v100, v100, v101", "v_add_f32 v102, v102, v101", "v_cvt_pk_bf16_f32 v60, v101, v102"]
for sh in (0, 1, 0, 1):
    run(f"att-like shift={sh}", mk(fa, sh), 32)
```
